```python
import torch

def _softmax(x, axis=-1):
    return torch.softmax(x, dim=axis)
def _gelu(x):
    return torch.nn.functional.gelu(x, approximate="tanh")
def _silu(x):
    return torch.nn.functional.silu(x)
def _sigmoid(x):
    return torch.sigmoid(x)
def _layernorm(x, axis=-1, eps=1e-5):
    m = x.mean(dim=axis, keepdim=True)
    v = x.var(dim=axis, keepdim=True, unbiased=False)
    return (x - m) / torch.sqrt(v + eps)
def _scatter_add(tgt, idx, src, axis=0):
    return tgt.clone().index_add_(axis, idx, src)
def _segment_sum(src, seg, n):
    out = torch.zeros((n,) + src.shape[1:], dtype=src.dtype)
    return out.index_add_(0, seg, src)
def _pad(x, pw):
    flat = tuple(v for pair in reversed(pw) for v in pair)
    return torch.nn.functional.pad(x, flat)

kernel_name = 'standalone__mha_block_cached__near_ridge'

def setup_inputs():

    _w = (lambda a: (lambda t: t.to(torch.bfloat16) if t.is_floating_point() else t)(torch.as_tensor(a)))
    B, Sq, D = 8, 224, 512
    H, Sk, Dh = 32, 1024, 128
    return {
        "x": _w((lambda *s: torch.randn(*s, dtype=torch.bfloat16) * 0.8)(B, Sq, D)),
        "k_cache": _w((lambda *s: torch.randn(*s, dtype=torch.bfloat16) * 0.8)(B, H, Sk, Dh)),
        "v_cache": _w((lambda *s: torch.randn(*s, dtype=torch.bfloat16) * 0.05)(B, H, Sk, Dh)),
        "wq": _w((lambda *s: torch.randn(*s, dtype=torch.bfloat16) * 0.8)(D, H * Dh) * (D ** -0.5)),
        "wo": _w((lambda *s: torch.randn(*s, dtype=torch.bfloat16) * 0.05)(H * Dh, D) * ((H * Dh) ** -0.5)),
    }

def reference(x, k_cache, v_cache, wq, wo):
    B, Sq, D = x.shape
    H, Dh = 32, 128
    q = (lambda x, *d: x.permute(*d))((x @ wq).reshape(B, Sq, H, Dh), 0, 2, 1, 3)
    scores = torch.einsum("bhqd,bhkd->bhqk", q, k_cache) * (Dh ** -0.5)
    p = _softmax(scores, axis=-1)
    o = torch.einsum("bhqk,bhkd->bhqd", p, v_cache)
    return (lambda x, *d: x.permute(*d))(o, 0, 2, 1, 3).reshape(B, Sq, H * Dh) @ wo
```

```python
import sys, struct

OUT = sys.argv[1] if len(sys.argv) > 1 else 'standalone__mha_block_cached__near_ridge.s'

L = []
def E(s): L.append('  ' + s)
def LB(s): L.append(s + ':')
def C(s): L.append('  ; ' + s)

def f32bits(x): return struct.unpack('<I', struct.pack('<f', x))[0]

WS_W_OFF = 16 * 1024 * 1024
WS_USED = WS_W_OFF + 4 * 1024 * 1024
SLOT = 16384
PAIR = 32768
LDS_BYTES = 163840

S_X, S_K, S_V, S_WQ, S_WS, S_WO = 4, 8, 12, 16, 20, 24
sB, sH, sW = 28, 29, 30
sT0, sT1, sT2, sT3 = 48, 49, 50, 51
sXROW, sWGE4, sW4 = 52, 53, 54
sPAIR, sNXT, sDELTA, sCNT, sTHR = 55, 56, 57, 58, 59
sC = 60
sKOFF, sVOFF, sLDS = 61, 62, 63

def srd(n): return f's[{n}:{n+3}]'
def vr(a, n): return f'v[{a}:{a+n-1}]'

vO = 0
vS = [64, 80]
vNM = 96
vQ = 112
vP = [144, 152]
vF = 160
vKA = 192
vVA = 200
vT = 204
vL, vLS = 212, 213
vXO = 214
vXL = 216
vLANE = 220
vWL = 221
vTMP = 225
vXF = [160, 164]
vWF = [64, 80]
vXA = 192
vWA = 200

LA = 6
NPOOL = 8

def header():
    L.append('; Kernarg layout for this problem (64 bytes, ptrs only, base s[0:1]):')
    L.append(f'; @launch kernel=mha_attn_kernel grid=(256,1,1) block=(512,1,1) lds={LDS_BYTES}')
    L.append('; @launch kernel=mha_oproj_kernel grid=(224,1,1) block=(512,1,1) lds=131072')
    L.append('.amdgcn_target "amdgcn-amd-amdhsa--gfx950"')
    L.append('.text')

def kd(name, vgpr, sgpr):
    L.append('.section .rodata,"a"')
    L.append('.p2align 6')
    L.append(f'.amdhsa_kernel {name}')
    L.append(f'  .amdhsa_next_free_vgpr {vgpr}')
    L.append(f'  .amdhsa_next_free_sgpr {sgpr}')
    L.append(f'  .amdhsa_accum_offset {(vgpr+3)//4*4}')
    L.append('  .amdhsa_group_segment_fixed_size 0')
    L.append('  .amdhsa_kernarg_size 64')
    L.append('  .amdhsa_user_sgpr_count 2')
    L.append('  .amdhsa_user_sgpr_kernarg_segment_ptr 1')
    L.append('  .amdhsa_system_sgpr_workgroup_id_x 1')
    L.append('.end_amdhsa_kernel')
    L.append('.text')

def mk_srd(n, lo, hi, size):
    E(f's_mov_b32 s{n}, s{lo}')
    E(f's_and_b32 s{n+1}, s{hi}, 0xffff')
    E(f's_mov_b32 s{n+2}, {size}')
    E(f's_mov_b32 s{n+3}, 0x20000')

def mfma(d, a, b, c):
    cs = '0' if c is None else vr(c, 16)
    E(f'v_mfma_f32_32x32x16_bf16 {vr(d,16)}, {vr(a,4)}, {vr(b,4)}, {cs}')

def k1():
    L.append('.globl mha_attn_kernel')
    L.append('.p2align 8')
    L.append('.type mha_attn_kernel,@function')
    LB('mha_attn_kernel')
    E('s_cmp_ge_u32 s2, 256')
    E('s_cbranch_scc1 K1_END')
    E('s_load_dwordx16 s[32:47], s[0:1], 0')
    E('s_and_b32 s48, s2, 7')
    E('s_lshr_b32 s49, s2, 3')
    E('s_and_b32 s50, s48, 1')
    E('s_lshl_b32 s50, s50, 2')
    E('s_and_b32 s51, s49, 3')
    E(f's_add_u32 s{sB}, s50, s51')
    E('s_lshr_b32 s50, s48, 1')
    E('s_lshl_b32 s50, s50, 3')
    E('s_lshr_b32 s51, s49, 2')
    E(f's_add_u32 s{sH}, s50, s51')
    E(f'v_lshrrev_b32 v1, 6, v0')
    E(f'v_and_b32 v{vLANE}, 63, v0')
    E('s_nop 0')
    E(f'v_readfirstlane_b32 s{sW}, v1')
    E('s_waitcnt lgkmcnt(0)')
    mk_srd(S_X, 32, 33, 8*224*512*2)
    E(f's_lshl_b32 s48, s{sB}, 5')
    E(f's_add_u32 s48, s48, s{sH}')
    E('s_lshl_b32 s49, s48, 18')
    E('s_lshr_b32 s50, s48, 14')
    E('s_add_u32 s34, s34, s49')
    E('s_addc_u32 s35, s35, s50')
    E('s_add_u32 s36, s36, s49')
    E('s_addc_u32 s37, s37, s50')
    mk_srd(S_K, 34, 35, 262144)
    mk_srd(S_V, 36, 37, 262144)
    mk_srd(S_WQ, 38, 39, 512*4096*2)
    mk_srd(S_WO, 40, 41, 4096*512*2)
    mk_srd(S_WS, 46, 47, WS_USED)
    E(f's_cmp_eq_u32 s{sW}, 7')
    E('s_cbranch_scc1 K1_LOADER')
    k1_compute()
    LB('K1_LOADER')
    k1_loader()
    LB('K1_END')
    E('s_endpgm')

def xslots(c):
    return (3*c) % 10, (3*c+1) % 10, (3*c+2) % 10

def x_base_sgpr(c, dst):
    a, b_, _ = xslots(c)
    E(f's_mul_i32 s{dst}, s{sWGE4}, {(b_-a)*SLOT}')
    E(f's_add_u32 s{dst}, s{dst}, {a*SLOT}')
    E(f's_add_u32 s{dst}, s{dst}, s{sW4}')

def x_dma(c):
    x_base_sgpr(c, sT0)
    for p in range(4):
        E(f's_add_u32 m0, s{sT0}, {p*1024}')
        E(f's_add_u32 s{sT1}, s{sXROW}, {p*8192 + c*128}')
        E(f'buffer_load_dwordx4 v{vXO+(p&1)}, {srd(S_X)}, s{sT1} offen lds')

def k1_compute():
    ln = f'v{vLANE}'
    t = vTMP
    C('lane-derived constants')
    E(f's_cmp_ge_u32 s{sW}, 4')
    E(f's_cselect_b32 s{sWGE4}, 1, 0')
    E(f's_and_b32 s{sW4}, s{sW}, 3')
    E(f's_lshl_b32 s{sW4}, s{sW4}, 12')
    E(f's_mul_i32 s{sXROW}, s{sB}, 224')
    E(f's_lshl_b32 s{sT0}, s{sW}, 5')
    E(f's_add_u32 s{sXROW}, s{sXROW}, s{sT0}')
    E(f's_lshl_b32 s{sXROW}, s{sXROW}, 10')
    E(f'v_lshrrev_b32 v{t}, 3, {ln}')
    E(f'v_lshrrev_b32 v{t+1}, 4, {ln}')
    E(f'v_and_b32 v{t+2}, 7, {ln}')
    E(f'v_xor_b32 v{t+2}, v{t+2}, v{t+1}')
    E(f'v_lshlrev_b32 v{t+2}, 4, v{t+2}')
    E(f'v_lshl_add_u32 v{vXO}, v{t}, 10, v{t+2}')
    E(f'v_xor_b32 v{vXO+1}, 64, v{vXO}')
    for c in range(3):
        x_dma(c)
    E(f'v_and_b32 v{t}, 31, {ln}')
    E(f'v_lshrrev_b32 v{t+1}, 5, {ln}')
    E(f'v_bfe_u32 v{t+2}, {ln}, 1, 3')
    E(f'v_xor_b32 v{t+2}, v{t+2}, v{t+1}')
    E(f'v_lshlrev_b32 v{t+2}, 4, v{t+2}')
    E(f'v_lshl_add_u32 v{vXL}, v{t}, 7, v{t+2}')
    for s in range(1, 4):
        E(f'v_xor_b32 v{vXL+s}, {32*s}, v{vXL}')
    E(f'v_bfe_u32 v{t+2}, {ln}, 2, 2')
    E(f'v_bfe_u32 v{t+3}, {ln}, 4, 1')
    E(f'v_and_b32 v{t+4}, 1, {ln}')
    E(f'v_bfe_u32 v{t+5}, {ln}, 1, 1')
    E(f'v_lshlrev_b32 v{t+6}, 6, v{t+2}')
    E(f'v_lshl_add_u32 v{t+6}, v{t+3}, 5, v{t+6}')
    E(f'v_lshl_add_u32 v{t+6}, v{t+4}, 4, v{t+6}')
    E(f'v_lshl_add_u32 v{t+6}, v{t+5}, 3, v{t+6}')
    E(f'v_lshl_add_u32 v{t+6}, v{t+2}, 8, v{t+6}')
    E(f'v_lshl_add_u32 v{vWL}, v{t+1}, 11, v{t+6}')
    for j in range(1, 4):
        E(f'v_xor_b32 v{vWL+j}, {64*j}, v{vWL}')
    E(f's_mov_b32 s{sC}, {hex(f32bits(1.4426950408889634 / (128 ** 0.5)))}')
    E(f's_mov_b32 s{sTHR}, 0x53800000')

    def q_reads(n):
        c, s = divmod(n, 4)
        E(f'ds_read_b128 {vr(vXF[n&1],4)}, v{vXA+s}')
        for j in range(4):
            for r in range(2):
                E(f'ds_read_b64_tr_b16 {vr(vWF[n&1]+4*j+2*r,2)}, v{vWA+j} offset:{4096*s+1024*r}')

    def q_chunk_open(c):
        n_after = 8 if c == 0 else (4 if c < 7 else 0)
        E(f's_waitcnt vmcnt({n_after})')
        E('s_barrier')
        if 1 <= c <= 5:
            x_dma(c + 2)
        x_base_sgpr(c, sT0)
        for s in range(4):
            E(f'v_add_u32 v{vXA+s}, s{sT0}, v{vXL+s}')
        for j in range(4):
            E(f'v_add_u32 v{vWA+j}, {xslots(c)[2]*SLOT}, v{vWL+j}')

    C('Q projection')
    q_chunk_open(0)
    q_reads(0)
    for n in range(32):
        E('s_waitcnt lgkmcnt(0)')
        if n + 1 < 32:
            if (n + 1) % 4 == 0:
                q_chunk_open((n + 1) // 4)
            q_reads(n + 1)
        for j in range(4):
            mfma(vO + 16*j, vWF[n&1] + 4*j, vXF[n&1], None if n == 0 else vO + 16*j)

    C('attention addresses')
    E(f'v_and_b32 v{t+2}, 15, {ln}')
    E(f'v_xor_b32 v{t+2}, v{t+2}, v{t+1}')
    E(f'v_lshlrev_b32 v{t+2}, 4, v{t+2}')
    E(f'v_lshl_add_u32 v{t+2}, v{t}, 8, v{t+2}')
    E(f'v_add_u32 v{vKA}, {2*PAIR}, v{t+2}')
    for s in range(1, 8):
        E(f'v_xor_b32 v{vKA+s}, {32*s}, v{vKA}')
    E(f'v_lshl_add_u32 v{t+3}, v{t+1}, 10, v{t+6}')
    E(f'v_add_u32 v{vVA}, {2*PAIR}, v{t+3}')
    for j in range(1, 4):
        E(f'v_xor_b32 v{vVA+j}, {64*j}, v{vVA}')
    E(f's_mov_b32 s{sPAIR}, {2*PAIR}')
    E('s_barrier')
    for s in range(8):
        E(f'ds_read_b128 {vr(vF+4*s,4)}, v{vKA+s} offset:{SLOT}')
    C('Q scale + convert')
    E('s_nop 4')
    for j in range(4):
        for hf in range(2):
            sp = 2*j + hf
            for e in range(0, 8, 2):
                a = vO + 16*j + 8*hf + e
                E(f'v_mul_f32 v{a}, s{sC}, v{a}')
                E(f'v_mul_f32 v{a+1}, s{sC}, v{a+1}')
                E(f'v_cvt_pk_bf16_f32 v{vQ+4*sp+e//2}, v{a}, v{a+1}')
    for i in range(64):
        E(f'v_mov_b32 v{vO+i}, 0')
    E(f'v_mov_b32 v{vL}, 0')
    C('QK(0)')
    for s in range(8):
        E(f's_waitcnt lgkmcnt({7-s})')
        mfma(vS[0], vF + 4*s, vQ + 4*s, None if s == 0 else vS[0])

    ops = []
    for u in range(32):
        if u + 1 <= 31:
            for s in range(8):
                ops.append(dict(kind='qk', unit=u+1, s=s, it=u))
        if u >= 1:
            for m in range(2):
                for j in range(4):
                    ops.append(dict(kind='pv', unit=u-1, m=m, j=j, it=u))
    for m in range(2):
        for j in range(4):
            ops.append(dict(kind='pv', unit=31, m=m, j=j, it=32))
    N = len(ops)
    def group_of(op):
        return op['unit'] // 2 - 1 if op['kind'] == 'qk' else op['unit'] // 2
    def nlds(op): return 1 if op['kind'] == 'qk' else 2
    def frag_reads(n):
        op = ops[n]; f = vF + 4*(n % NPOOL)
        if op['kind'] == 'qk':
            E(f'ds_read_b128 {vr(f,4)}, v{vKA+op["s"]} offset:{SLOT + 8192*(op["unit"]%2)}')
        else:
            mp = 2*(op['unit'] % 2) + op['m']
            E(f'ds_read_b64_tr_b16 {vr(f,2)}, v{vVA+op["j"]} offset:{4096*mp}')
            E(f'ds_read_b64_tr_b16 {vr(f+2,2)}, v{vVA+op["j"]} offset:{4096*mp+2048}')
    def group_switch():
        E(f's_add_u32 s{sNXT}, s{sPAIR}, {PAIR}')
        E(f's_cmp_eq_u32 s{sNXT}, {LDS_BYTES}')
        E(f's_cselect_b32 s{sNXT}, 0, s{sNXT}')
        E(f's_sub_u32 s{sDELTA}, s{sNXT}, s{sPAIR}')
        E(f's_mov_b32 s{sPAIR}, s{sNXT}')
        for s in range(8):
            E(f'v_add_u32 v{vKA+s}, s{sDELTA}, v{vKA+s}')
        for j in range(4):
            E(f'v_add_u32 v{vVA+j}, s{sDELTA}, v{vVA+j}')
        E('s_barrier')
    def sm_ops(p):
        o = [f'v_mov_b32 v{vLS}, v{vL}']
        for k in range(8):
            t0 = vT + 2*(k % 4)
            o.append(f'v_exp_f32 v{t0}, v{vS[p]+2*k}')
            o.append(f'v_exp_f32 v{t0+1}, v{vS[p]+2*k+1}')
            o.append(f'v_add_f32 v{vL}, v{vL}, v{t0}')
            o.append(f'v_add_f32 v{vL}, v{vL}, v{t0+1}')
            o.append(f'v_cvt_pk_bf16_f32 v{vP[p]+k}, v{t0}, v{t0+1}')
        return o

    for n in range(LA):
        frag_reads(n)
    C('first-unit max')
    E('s_nop 7')
    def maxtree(p, dst, tmp):
        s = vS[p]
        E(f'v_max3_f32 v{dst}, v{s}, v{s+1}, v{s+2}')
        E(f'v_max3_f32 v{tmp}, v{s+3}, v{s+4}, v{s+5}')
        E(f'v_max3_f32 v{dst}, v{dst}, v{s+6}, v{s+7}')
        E(f'v_max3_f32 v{tmp}, v{tmp}, v{s+8}, v{s+9}')
        E(f'v_max3_f32 v{dst}, v{dst}, v{s+10}, v{s+11}')
        E(f'v_max3_f32 v{tmp}, v{tmp}, v{s+12}, v{s+13}')
        E(f'v_max3_f32 v{dst}, v{dst}, v{s+14}, v{s+15}')
        E(f'v_max_f32 v{dst}, v{dst}, v{tmp}')
        E(f'v_mov_b32 v{tmp}, v{dst}')
        E('s_nop 1')
        E(f'v_permlane32_swap_b32 v{dst}, v{tmp}')
        E('s_nop 1')
        E(f'v_max_f32 v{dst}, v{dst}, v{tmp}')
    maxtree(0, vT, vT+1)
    for i in range(16):
        E(f'v_sub_f32 v{vNM+i}, 0, v{vT}')
        E(f'v_sub_f32 v{vS[0]+i}, v{vS[0]+i}, v{vT}')

    it_first = {}
    it_last = {}
    for n, op in enumerate(ops):
        it_first.setdefault(op['it'], n)
        it_last[op['it']] = n

    def emit_slots(n0, n1):
        for n in range(n0, n1):
            op = ops[n]
            u = op['it']
            cnt = sum(nlds(ops[k]) for k in range(n+1, min(n+LA, N)))
            E(f's_waitcnt lgkmcnt({cnt})')
            f = vF + 4*(n % NPOOL)
            if op['kind'] == 'qk':
                p = op['unit'] % 2
                mfma(vS[p], f, vQ + 4*op['s'], vNM if op['s'] == 0 else vS[p])
            else:
                p = op['unit'] % 2
                mfma(vO + 16*op['j'], f, vP[p] + 4*op['m'], vO + 16*op['j'])
            if n + LA < N:
                if group_of(ops[n+LA]) != group_of(ops[n+LA-1]):
                    group_switch()
                frag_reads(n + LA)
            if u <= 31:
                so = sm_ops(u % 2)
                ns = it_last[u] - it_first[u] + 1
                k = n - it_first[u]
                lo = (len(so) * k) // ns
                hi = (len(so) * (k+1)) // ns
                for x in so[lo:hi]:
                    E(x)
                if n == it_last[u]:
                    tag = f'{u}'
                    E(f'v_cmp_nge_f32 vcc, s{sTHR}, v{vL}')
                    E(f's_cbranch_vccnz K1_RARE_{tag}')
                    LB(f'K1_BACK_{tag}')
                    rare_sites.append((tag, u % 2))

    rare_sites = []
    emit_slots(it_first[0], it_last[0] + 1)
    E(f's_mov_b32 s{sCNT}, 14')
    LB('K1_LOOP')
    mark = len(L)
    emit_slots(it_first[1], it_last[2] + 1)
    body0 = L[mark:]
    E(f's_sub_u32 s{sCNT}, s{sCNT}, 1')
    E(f's_cmp_lg_u32 s{sCNT}, 0')
    E('s_cbranch_scc1 K1_LOOP')
    save = list(L); rs = list(rare_sites)
    mark = len(L)
    emit_slots(it_first[3], it_last[4] + 1)
    body1 = [x.replace('_3', '_1').replace('_4', '_2') if 'K1_' in x else x for x in L[mark:]]
    assert body0 == body1, 'loop body not periodic'
    del L[len(save):]; rare_sites[:] = rs
    emit_slots(it_first[29], N)

    C('epilogue')
    E('s_nop 15')
    E(f'v_mov_b32 v{vT}, v{vL}')
    E(f'v_mov_b32 v{vT+1}, v{vL}')
    E('s_nop 1')
    E(f'v_permlane32_swap_b32 v{vT}, v{vT+1}')
    E('s_nop 1')
    E(f'v_add_f32 v{vT}, v{vT}, v{vT+1}')
    E(f'v_rcp_f32 v{vT}, v{vT}')
    E(f's_mul_i32 s{sT0}, s{sB}, 7')
    E(f's_add_u32 s{sT0}, s{sT0}, s{sW}')
    E(f's_lshl_b32 s{sT0}, s{sT0}, 8')
    E(f's_lshl_b32 s{sT1}, s{sH}, 3')
    E(f's_add_u32 s{sT0}, s{sT0}, s{sT1}')
    E(f's_lshl_b32 s{sT0}, s{sT0}, 10')
    E(f's_add_u32 s{sT1}, s{sT0}, 4096')
    E(f'v_lshlrev_b32 v{vT+1}, 4, {ln}')
    for sp in range(8):
        j, hf = divmod(sp, 2)
        d = vF + 4*sp
        for e in range(0, 8, 2):
            a = vO + 16*j + 8*hf + e
            E(f'v_mul_f32 v{a}, v{vT}, v{a}')
            E(f'v_mul_f32 v{a+1}, v{vT}, v{a+1}')
            E(f'v_cvt_pk_bf16_f32 v{d+e//2}, v{a}, v{a+1}')
        E(f'buffer_store_dwordx4 {vr(d,4)}, v{vT+1}, {srd(S_WS)}, s{sT0 if sp < 4 else sT1} offen offset:{1024*(sp%4)}')
    E('s_endpgm')

    for tag, p in rare_sites:
        LB(f'K1_RARE_{tag}')
        E('s_nop 15')
        E('s_nop 3')
        maxtree(p, vT, vT+1)
        E(f'v_max_f32 v{vT}, 0, v{vT}')
        E(f'v_exp_f32 v{vT+1}, -v{vT}')
        E('s_nop 0')
        for i in range(64):
            E(f'v_mul_f32 v{vO+i}, v{vT+1}, v{vO+i}')
        E(f'v_mul_f32 v{vL}, v{vT+1}, v{vLS}')
        for i in range(16):
            E(f'v_sub_f32 v{vNM+i}, v{vNM+i}, v{vT}')
            E(f'v_sub_f32 v{vS[0]+i}, v{vS[0]+i}, v{vT}')
            E(f'v_sub_f32 v{vS[1]+i}, v{vS[1]+i}, v{vT}')
        for x in sm_ops(p)[1:]:
            x = x
            E(x)
        E('s_nop 1')
        E(f's_branch K1_BACK_{tag}')

def k1_loader():
    ln = f'v{vLANE}'
    vKo, vVo, vWo = 2, 6, 7
    C('loader wave')
    E(f'v_lshrrev_b32 v10, 4, {ln}')
    E(f'v_and_b32 v11, 15, {ln}')
    E('v_xor_b32 v12, v11, v10')
    E('v_lshlrev_b32 v12, 4, v12')
    E(f'v_lshl_add_u32 v{vKo}, v10, 8, v12')
    for pp in range(1, 4):
        E(f'v_xor_b32 v{vKo+pp}, {64*pp}, v{vKo}')
    E('v_lshlrev_b32 v12, 2, v10')
    E('v_xor_b32 v12, v11, v12')
    E('v_lshlrev_b32 v12, 4, v12')
    E(f'v_lshl_add_u32 v{vVo}, v10, 8, v12')
    E(f'v_lshl_add_u32 v{vWo}, v10, 13, v12')
    E(f's_lshl_b32 s{sT3}, s{sH}, 8')

    def wq_fill(c):
        sl = xslots(c)[2]
        for p in range(16):
            E(f's_mov_b32 m0, {sl*SLOT + p*1024}')
            E(f's_add_u32 s{sT1}, s{sT3}, {(64*c + 4*p) * 8192}')
            E(f'buffer_load_dwordx4 v{vWo}, {srd(S_WQ)}, s{sT1} offen lds')
    def kv_fill(which, tile, ldsbase):
        for g in range(4):
            E(f's_mov_b32 m0, {ldsbase + g*4096}')
            E(f's_mov_b32 s{sT1}, {tile*16384 + g*4096}')
            for pp in range(4):
                vo = vKo + pp if which == 'K' else vVo
                E(f'buffer_load_dwordx4 v{vo}, {srd(S_K if which=="K" else S_V)}, s{sT1} offen offset:{1024*pp} lds')
    def group_fill(t):
        pair = (3 + t) % 5
        kv_fill('V', t, pair*PAIR)
        if t + 1 <= 15:
            kv_fill('K', t + 1, pair*PAIR + SLOT)

    wq_fill(0); wq_fill(1); wq_fill(2)
    E('s_waitcnt vmcnt(32)'); E('s_barrier')
    for c in range(1, 6):
        E('s_waitcnt vmcnt(16)'); E('s_barrier')
        wq_fill(c + 2)
    E('s_waitcnt vmcnt(16)'); E('s_barrier')
    kv_fill('K', 0, 2*PAIR + SLOT)
    group_fill(0)
    E('s_waitcnt vmcnt(48)'); E('s_barrier')
    E('s_waitcnt vmcnt(32)'); E('s_barrier')
    group_fill(1)
    for t in range(0, 16):
        if t <= 13: n = 32
        elif t == 14: n = 16
        else: n = 0
        E(f's_waitcnt vmcnt({n})'); E('s_barrier')
        if t + 2 <= 15:
            group_fill(t + 2)
    C('wo fragment re-layout')
    E(f'v_and_b32 v10, 0x13, {ln}')
    E(f'v_bfe_u32 v11, {ln}, 2, 1')
    E(f'v_bfe_u32 v12, {ln}, 3, 1')
    E('v_lshl_add_u32 v10, v11, 3, v10')
    E('v_lshl_add_u32 v10, v12, 2, v10')
    E('v_lshlrev_b32 v10, 1, v10')
    E(f'v_lshrrev_b32 v11, 5, {ln}')
    E('v_lshl_add_u32 v10, v11, 13, v10')
    E(f'v_add_u32 v11, 4096, v10')
    E(f'v_lshlrev_b32 v12, 4, {ln}')
    E(f's_lshl_b32 s{sT0}, s2, 14')
    E(f's_lshl_b32 s{sT2}, s2, 10')
    E(f's_add_u32 s{sT2}, s{sT2}, {WS_W_OFF}')
    for nb in range(16):
        d = 16 + 8*nb
        E(f's_add_u32 s{sT1}, s{sT0}, {nb*64}')
        for e in range(8):
            va = 10 if e < 4 else 11
            E(f'buffer_load_ushort v{d+e}, v{va}, {srd(S_WO)}, s{sT1} offen offset:{1024*(e%4)}')
        if nb % 4 == 3:
            E('s_waitcnt vmcnt(0)')
            for k in range(nb-3, nb+1):
                dd = 16 + 8*k
                for e in range(0, 8, 2):
                    E(f'v_lshl_or_b32 v{160+4*k+e//2}, v{dd+e+1}, 16, v{dd+e}')
                E(f's_add_u32 s{sT1}, s{sT2}, {k*256*1024}')
                E(f'buffer_store_dwordx4 {vr(160+4*k,4)}, v12, {srd(S_WS)}, s{sT1} offen')

def k2():
    L.append('.globl mha_oproj_kernel')
    L.append('.p2align 8')
    L.append('.type mha_oproj_kernel,@function')
    LB('mha_oproj_kernel')
    S_WS2, S_OUT = 4, 8
    E('s_cmp_ge_u32 s2, 224')
    E('s_cbranch_scc1 K2_END')
    E('s_load_dwordx2 s[12:13], s[0:1], 40')
    E('s_load_dwordx2 s[14:15], s[0:1], 56')
    E('s_and_b32 s16, s2, 7')
    E('s_lshr_b32 s17, s2, 3')
    E('s_mul_i32 s18, s17, 37')
    E('s_lshr_b32 s18, s18, 8')
    E('s_mul_i32 s19, s18, 7')
    E('s_sub_u32 s19, s17, s19')
    E('s_lshr_b32 s20, s16, 1')
    E('s_mul_i32 s20, s20, 7')
    E('s_add_u32 s20, s20, s19')
    E('s_and_b32 s21, s16, 1')
    E('s_lshl_b32 s21, s21, 2')
    E('s_add_u32 s21, s21, s18')
    E('v_lshrrev_b32 v193, 6, v0')
    E('v_and_b32 v194, 63, v0')
    E('s_nop 0')
    E('v_readfirstlane_b32 s22, v193')
    E('v_lshlrev_b32 v195, 4, v194')
    E('s_waitcnt lgkmcnt(0)')
    mk_srd(S_WS2, 14, 15, WS_USED)
    mk_srd(S_OUT, 12, 13, 8*224*512*2)
    E('s_lshl_b32 s23, s22, 15')
    E('s_lshl_b32 s24, s20, 19')
    E('s_add_u32 s24, s24, s23')
    E('s_add_u32 s25, s24, 0x40000')
    E('s_lshl_b32 s26, s21, 19')
    E('s_add_u32 s26, s26, s23')
    E(f's_add_u32 s26, s26, {WS_W_OFF}')
    E('s_add_u32 s27, s26, 0x40000')
    ACC = 0
    BUF = 64
    DEPTH = 8
    def loads(ks):
        d = BUF + 16*(ks % DEPTH)
        g, o = divmod(ks, 4)
        if o == 0 and ks > 0:
            for r in range(24, 28):
                E(f's_add_u32 s{r}, s{r}, 4096')
        for st in range(4):
            E(f'buffer_load_dwordx4 {vr(d+4*st,4)}, v195, {srd(S_WS2)}, s{24+st} offen offset:{1024*o}')
    for ks in range(DEPTH - 1):
        loads(ks)
    for ks in range(32):
        if ks + DEPTH - 1 < 32:
            loads(ks + DEPTH - 1)
        rem = min(32 - 1 - ks, DEPTH - 1)
        E(f's_waitcnt vmcnt({4*rem})')
        d = BUF + 16*(ks % DEPTH)
        for a in range(2):
            for b_ in range(2):
                acc = ACC + 16*(2*a + b_)
                mfma(acc, d + 8 + 4*a, d + 4*b_, None if ks == 0 else acc)
    E('s_nop 15')
    E('s_lshl_b32 s23, s22, 14')
    E('v_add_u32 v196, s23, v195')
    for sl in range(8):
        for q4 in range(2):
            r = ACC + 8*sl + 4*q4
            E(f'ds_write_b128 v196, {vr(r,4)} offset:{sl*2048 + q4*1024}')
    E('s_waitcnt lgkmcnt(0)')
    E('s_barrier')
    E('s_lshl_b32 s23, s22, 11')
    E('v_add_u32 v196, s23, v195')
    E('v_add_u32 v197, 0x10000, v196')
    for p in range(8):
        va = 196 if p < 4 else 197
        for q4 in range(2):
            E(f'ds_read_b128 {vr(64+8*p+4*q4,4)}, v{va} offset:{(p%4)*16384 + q4*1024}')
    E('s_lshr_b32 s24, s22, 2')
    E('s_bfe_u32 s25, s22, 0x10001')
    E('s_and_b32 s26, s22, 1')
    E('s_lshl_b32 s27, s20, 6')
    E('s_lshl_b32 s25, s25, 5')
    E('s_add_u32 s27, s27, s25')
    E('s_lshl_b32 s27, s27, 10')
    E('s_lshl_b32 s28, s21, 7')
    E('s_lshl_b32 s24, s24, 6')
    E('s_lshl_b32 s26, s26, 5')
    E('s_add_u32 s27, s27, s28')
    E('s_add_u32 s27, s27, s24')
    E('s_add_u32 s27, s27, s26')
    E('v_and_b32 v198, 31, v194')
    E('v_lshrrev_b32 v199, 5, v194')
    E('v_lshlrev_b32 v199, 4, v199')
    E('v_lshl_add_u32 v198, v198, 10, v199')
    for p in range(1, 8):
        E(f's_waitcnt lgkmcnt({2*(7-p)})')
        for i in range(8):
            E(f'v_add_f32 v{64+i}, v{64+i}, v{64+8*p+i}')
    for i in range(4):
        E(f'v_cvt_pk_bf16_f32 v{200+i}, v{64+2*i}, v{64+2*i+1}')
    E(f'buffer_store_dwordx4 v[200:203], v198, {srd(S_OUT)}, s27 offen')
    LB('K2_END')
    E('s_endpgm')

header()
k1()
k2()
kd('mha_attn_kernel', 232, 72)
kd('mha_oproj_kernel', 204, 40)
open(OUT, 'w').write('\n'.join(L) + '\n')
print('wrote', OUT, len(L), 'lines')
```

```python
import sys, struct

OUT = sys.argv[1] if len(sys.argv) > 1 else 'standalone__mha_block_cached__near_ridge.s'

import os
PROF = int(os.environ.get('PROF', '0'))
NT_KV = os.environ.get('NT_KV', 'nt')
NT_X = os.environ.get('NT_X', '')
NT_W = os.environ.get('NT_W', '')
L = []
def E(s): L.append('  ' + s)
def LB(s): L.append(s + ':')
def C(s): L.append('  ; ' + s)

def f32bits(x): return struct.unpack('<I', struct.pack('<f', x))[0]

WS_W_OFF = 16 * 1024 * 1024
WS_USED = WS_W_OFF + 4 * 1024 * 1024
WS_PROF = 32 * 1024 * 1024
if PROF: WS_USED = WS_PROF + 2 * 1024 * 1024
vPROF = 236
sPIDX = 70
def stamp():
    if not PROF: return
    E('s_memtime s[66:67]')
    E('s_waitcnt lgkmcnt(0)')
    E(f's_mov_b32 m0, s{sPIDX}')
    E('s_nop 0')
    E(f'v_writelane_b32 v{vPROF}, s66, m0')
    E(f's_add_u32 s{sPIDX}, s{sPIDX}, 1')
def prof_dump(swave, srdn, extra=0):
    if not PROF: return
    E(f's_lshl_b32 s66, s2, 3')
    E(f's_add_u32 s66, s66, s{swave}')
    E(f's_lshl_b32 s66, s66, 8')
    E(f's_add_u32 s66, s66, {WS_PROF + extra}')
    E(f'v_mbcnt_lo_u32_b32 v{vPROF+1}, -1, 0')
    E(f'v_mbcnt_hi_u32_b32 v{vPROF+1}, -1, v{vPROF+1}')
    E(f'v_lshlrev_b32 v{vPROF+1}, 2, v{vPROF+1}')
    E(f'buffer_store_dword v{vPROF}, v{vPROF+1}, s[{srdn}:{srdn+3}], s66 offen')
def BAR():
    stamp()
    E('s_barrier')
    stamp()

SLOT = 16384
PAIR = 32768
LDS_BYTES = 163840

S_X, S_K, S_V, S_WQ, S_WS, S_WO = 4, 8, 12, 16, 20, 24
sB, sH, sW = 28, 29, 30
sT0, sT1, sT2, sT3 = 48, 49, 50, 51
sXROW, sWGE4, sW4 = 52, 53, 54
sPAIR, sNXT, sDELTA, sCNT, sTHR = 55, 56, 57, 58, 59
sC = 60
sKOFF, sVOFF, sLDS = 61, 62, 63

def srd(n): return f's[{n}:{n+3}]'
def vr(a, n): return f'v[{a}:{a+n-1}]'

vO = 0
vS = [64, 80]
vNM = 96
vQ = 112
vP = [144, 152]
vF = 160
vKA = 192
vVA = 200
vT = 204
vL, vLS = 212, 213
vXO = 214
vXL = 216
vLANE = 220
vWL = 221
vTMP = 225
vXF = [160, 164]
vWF = [64, 80]
vXA = 192
vWA = 200

LA = 6
NPOOL = 8

def header():
    L.append('; Kernarg layout for this problem (64 bytes, ptrs only, base s[0:1]):')
    L.append(f'; @launch kernel=mha_attn_kernel grid=(256,1,1) block=(512,1,1) lds={LDS_BYTES}')
    L.append('; @launch kernel=mha_oproj_kernel grid=(224,1,1) block=(512,1,1) lds=131072')
    L.append('.amdgcn_target "amdgcn-amd-amdhsa--gfx950"')
    L.append('.text')

def kd(name, vgpr, sgpr):
    L.append('.section .rodata,"a"')
    L.append('.p2align 6')
    L.append(f'.amdhsa_kernel {name}')
    L.append(f'  .amdhsa_next_free_vgpr {vgpr}')
    L.append(f'  .amdhsa_next_free_sgpr {sgpr}')
    L.append(f'  .amdhsa_accum_offset {(vgpr+3)//4*4}')
    L.append('  .amdhsa_group_segment_fixed_size 0')
    L.append('  .amdhsa_kernarg_size 64')
    L.append('  .amdhsa_user_sgpr_count 2')
    L.append('  .amdhsa_user_sgpr_kernarg_segment_ptr 1')
    L.append('  .amdhsa_system_sgpr_workgroup_id_x 1')
    L.append('.end_amdhsa_kernel')
    L.append('.text')

def mk_srd(n, lo, hi, size):
    E(f's_mov_b32 s{n}, s{lo}')
    E(f's_and_b32 s{n+1}, s{hi}, 0xffff')
    E(f's_mov_b32 s{n+2}, {size}')
    E(f's_mov_b32 s{n+3}, 0x20000')

def mfma(d, a, b, c):
    cs = '0' if c is None else vr(c, 16)
    E(f'v_mfma_f32_32x32x16_bf16 {vr(d,16)}, {vr(a,4)}, {vr(b,4)}, {cs}')

def k1():
    L.append('.globl mha_attn_kernel')
    L.append('.p2align 8')
    L.append('.type mha_attn_kernel,@function')
    LB('mha_attn_kernel')
    E('s_cmp_ge_u32 s2, 256')
    E('s_cbranch_scc1 K1_END')
    E('s_load_dwordx16 s[32:47], s[0:1], 0')
    E('s_and_b32 s48, s2, 7')
    E('s_lshr_b32 s49, s2, 3')
    E('s_and_b32 s50, s48, 1')
    E('s_lshl_b32 s50, s50, 2')
    E('s_and_b32 s51, s49, 3')
    E(f's_add_u32 s{sB}, s50, s51')
    E('s_lshr_b32 s50, s48, 1')
    E('s_lshl_b32 s50, s50, 3')
    E('s_lshr_b32 s51, s49, 2')
    E(f's_add_u32 s{sH}, s50, s51')
    E(f'v_lshrrev_b32 v1, 6, v0')
    E(f'v_and_b32 v{vLANE}, 63, v0')
    E('s_nop 0')
    E(f'v_readfirstlane_b32 s{sW}, v1')
    E('s_waitcnt lgkmcnt(0)')
    mk_srd(S_X, 32, 33, 8*224*512*2)
    E(f's_lshl_b32 s48, s{sB}, 5')
    E(f's_add_u32 s48, s48, s{sH}')
    E('s_lshl_b32 s49, s48, 18')
    E('s_lshr_b32 s50, s48, 14')
    E('s_add_u32 s34, s34, s49')
    E('s_addc_u32 s35, s35, s50')
    E('s_add_u32 s36, s36, s49')
    E('s_addc_u32 s37, s37, s50')
    mk_srd(S_K, 34, 35, 262144)
    mk_srd(S_V, 36, 37, 262144)
    mk_srd(S_WQ, 38, 39, 512*4096*2)
    mk_srd(S_WO, 40, 41, 4096*512*2)
    mk_srd(S_WS, 46, 47, WS_USED)
    if PROF:
        E(f's_mov_b32 s{sPIDX}, 0')
        E(f'v_mov_b32 v{vPROF}, 0')
    stamp()
    E(f's_cmp_eq_u32 s{sW}, 7')
    E('s_cbranch_scc1 K1_LOADER')
    k1_compute()
    LB('K1_LOADER')
    k1_loader()
    if PROF:
        E('s_waitcnt vmcnt(0)')
        stamp()
    prof_dump(sW, S_WS)
    LB('K1_END')
    E('s_endpgm')

def xslots(c):
    return (3*c) % 10, (3*c+1) % 10, (3*c+2) % 10

def x_base_sgpr(c, dst):
    a, b_, _ = xslots(c)
    E(f's_mul_i32 s{dst}, s{sWGE4}, {(b_-a)*SLOT}')
    E(f's_add_u32 s{dst}, s{dst}, {a*SLOT}')
    E(f's_add_u32 s{dst}, s{dst}, s{sW4}')

def x_dma(c):
    x_base_sgpr(c, sT0)
    for p in range(4):
        E(f's_add_u32 m0, s{sT0}, {p*1024}')
        E(f's_add_u32 s{sT1}, s{sXROW}, {p*8192 + c*128}')
        E(f'buffer_load_dwordx4 v{vXO+(p&1)}, {srd(S_X)}, s{sT1} offen {NT_X} lds')

def k1_compute():
    ln = f'v{vLANE}'
    t = vTMP
    C('lane-derived constants')
    E(f's_cmp_ge_u32 s{sW}, 4')
    E(f's_cselect_b32 s{sWGE4}, 1, 0')
    E(f's_and_b32 s{sW4}, s{sW}, 3')
    E(f's_lshl_b32 s{sW4}, s{sW4}, 12')
    E(f's_mul_i32 s{sXROW}, s{sB}, 224')
    E(f's_lshl_b32 s{sT0}, s{sW}, 5')
    E(f's_add_u32 s{sXROW}, s{sXROW}, s{sT0}')
    E(f's_lshl_b32 s{sXROW}, s{sXROW}, 10')
    E(f'v_lshrrev_b32 v{t}, 3, {ln}')
    E(f'v_lshrrev_b32 v{t+1}, 4, {ln}')
    E(f'v_and_b32 v{t+2}, 7, {ln}')
    E(f'v_xor_b32 v{t+2}, v{t+2}, v{t+1}')
    E(f'v_lshlrev_b32 v{t+2}, 4, v{t+2}')
    E(f'v_lshl_add_u32 v{vXO}, v{t}, 10, v{t+2}')
    E(f'v_xor_b32 v{vXO+1}, 64, v{vXO}')
    for c in range(3):
        x_dma(c)
    E(f'v_and_b32 v{t}, 31, {ln}')
    E(f'v_lshrrev_b32 v{t+1}, 5, {ln}')
    E(f'v_bfe_u32 v{t+2}, {ln}, 1, 3')
    E(f'v_xor_b32 v{t+2}, v{t+2}, v{t+1}')
    E(f'v_lshlrev_b32 v{t+2}, 4, v{t+2}')
    E(f'v_lshl_add_u32 v{vXL}, v{t}, 7, v{t+2}')
    for s in range(1, 4):
        E(f'v_xor_b32 v{vXL+s}, {32*s}, v{vXL}')
    E(f'v_bfe_u32 v{t+2}, {ln}, 2, 2')
    E(f'v_bfe_u32 v{t+3}, {ln}, 4, 1')
    E(f'v_and_b32 v{t+4}, 1, {ln}')
    E(f'v_bfe_u32 v{t+5}, {ln}, 1, 1')
    E(f'v_lshlrev_b32 v{t+6}, 6, v{t+2}')
    E(f'v_lshl_add_u32 v{t+6}, v{t+3}, 5, v{t+6}')
    E(f'v_lshl_add_u32 v{t+6}, v{t+4}, 4, v{t+6}')
    E(f'v_lshl_add_u32 v{t+6}, v{t+5}, 3, v{t+6}')
    E(f'v_lshl_add_u32 v{t+6}, v{t+2}, 8, v{t+6}')
    E(f'v_lshl_add_u32 v{vWL}, v{t+1}, 11, v{t+6}')
    for j in range(1, 4):
        E(f'v_xor_b32 v{vWL+j}, {64*j}, v{vWL}')
    E(f's_mov_b32 s{sC}, {hex(f32bits(1.4426950408889634 / (128 ** 0.5)))}')
    E(f's_mov_b32 s{sTHR}, 0x53800000')

    def q_reads(n):
        c, s = divmod(n, 4)
        E(f'ds_read_b128 {vr(vXF[n&1],4)}, v{vXA+s}')
        for j in range(4):
            for r in range(2):
                E(f'ds_read_b64_tr_b16 {vr(vWF[n&1]+4*j+2*r,2)}, v{vWA+j} offset:{4096*s+1024*r}')

    def q_chunk_open(c):
        n_after = 8 if c == 0 else (4 if c < 7 else 0)
        E(f's_waitcnt vmcnt({n_after})')
        BAR()
        if 1 <= c <= 5:
            x_dma(c + 2)
        x_base_sgpr(c, sT0)
        for s in range(4):
            E(f'v_add_u32 v{vXA+s}, s{sT0}, v{vXL+s}')
        for j in range(4):
            E(f'v_add_u32 v{vWA+j}, {xslots(c)[2]*SLOT}, v{vWL+j}')

    C('Q projection')
    q_chunk_open(0)
    q_reads(0)
    for n in range(32):
        E('s_waitcnt lgkmcnt(0)')
        if n + 1 < 32:
            if (n + 1) % 4 == 0:
                q_chunk_open((n + 1) // 4)
            q_reads(n + 1)
        for j in range(4):
            mfma(vO + 16*j, vWF[n&1] + 4*j, vXF[n&1], None if n == 0 else vO + 16*j)

    C('attention addresses')
    E(f'v_and_b32 v{t+2}, 15, {ln}')
    E(f'v_xor_b32 v{t+2}, v{t+2}, v{t+1}')
    E(f'v_lshlrev_b32 v{t+2}, 4, v{t+2}')
    E(f'v_lshl_add_u32 v{t+2}, v{t}, 8, v{t+2}')
    E(f'v_add_u32 v{vKA}, {2*PAIR}, v{t+2}')
    for s in range(1, 8):
        E(f'v_xor_b32 v{vKA+s}, {32*s}, v{vKA}')
    E(f'v_lshl_add_u32 v{t+3}, v{t+1}, 10, v{t+6}')
    E(f'v_add_u32 v{vVA}, {2*PAIR}, v{t+3}')
    for j in range(1, 4):
        E(f'v_xor_b32 v{vVA+j}, {64*j}, v{vVA}')
    E(f's_mov_b32 s{sPAIR}, {2*PAIR}')
    BAR()
    for s in range(8):
        E(f'ds_read_b128 {vr(vF+4*s,4)}, v{vKA+s} offset:{SLOT}')
    C('Q scale + convert')
    E('s_nop 4')
    for j in range(4):
        for hf in range(2):
            sp = 2*j + hf
            for e in range(0, 8, 2):
                a = vO + 16*j + 8*hf + e
                E(f'v_mul_f32 v{a}, s{sC}, v{a}')
                E(f'v_mul_f32 v{a+1}, s{sC}, v{a+1}')
                E(f'v_cvt_pk_bf16_f32 v{vQ+4*sp+e//2}, v{a}, v{a+1}')
    for i in range(64):
        E(f'v_mov_b32 v{vO+i}, 0')
    E(f'v_mov_b32 v{vL}, 0')
    C('QK(0)')
    for s in range(8):
        E(f's_waitcnt lgkmcnt({7-s})')
        mfma(vS[0], vF + 4*s, vQ + 4*s, None if s == 0 else vS[0])

    ops = []
    for u in range(32):
        if u + 1 <= 31:
            for s in range(8):
                ops.append(dict(kind='qk', unit=u+1, s=s, it=u))
        if u >= 1:
            for m in range(2):
                for j in range(4):
                    ops.append(dict(kind='pv', unit=u-1, m=m, j=j, it=u))
    for m in range(2):
        for j in range(4):
            ops.append(dict(kind='pv', unit=31, m=m, j=j, it=32))
    N = len(ops)
    def group_of(op):
        return op['unit'] // 2 - 1 if op['kind'] == 'qk' else op['unit'] // 2
    def nlds(op): return 1 if op['kind'] == 'qk' else 2
    def frag_reads(n):
        op = ops[n]; f = vF + 4*(n % NPOOL)
        if op['kind'] == 'qk':
            E(f'ds_read_b128 {vr(f,4)}, v{vKA+op["s"]} offset:{SLOT + 8192*(op["unit"]%2)}')
        else:
            mp = 2*(op['unit'] % 2) + op['m']
            E(f'ds_read_b64_tr_b16 {vr(f,2)}, v{vVA+op["j"]} offset:{4096*mp}')
            E(f'ds_read_b64_tr_b16 {vr(f+2,2)}, v{vVA+op["j"]} offset:{4096*mp+2048}')
    def group_switch():
        E(f's_add_u32 s{sNXT}, s{sPAIR}, {PAIR}')
        E(f's_cmp_eq_u32 s{sNXT}, {LDS_BYTES}')
        E(f's_cselect_b32 s{sNXT}, 0, s{sNXT}')
        E(f's_sub_u32 s{sDELTA}, s{sNXT}, s{sPAIR}')
        E(f's_mov_b32 s{sPAIR}, s{sNXT}')
        for s in range(8):
            E(f'v_add_u32 v{vKA+s}, s{sDELTA}, v{vKA+s}')
        for j in range(4):
            E(f'v_add_u32 v{vVA+j}, s{sDELTA}, v{vVA+j}')
        BAR()
    def sm_ops(p):
        o = [f'v_mov_b32 v{vLS}, v{vL}']
        for k in range(8):
            t0 = vT + 2*(k % 4)
            o.append(f'v_exp_f32 v{t0}, v{vS[p]+2*k}')
            o.append(f'v_exp_f32 v{t0+1}, v{vS[p]+2*k+1}')
            o.append(f'v_add_f32 v{vL}, v{vL}, v{t0}')
            o.append(f'v_add_f32 v{vL}, v{vL}, v{t0+1}')
            o.append(f'v_cvt_pk_bf16_f32 v{vP[p]+k}, v{t0}, v{t0+1}')
        return o

    for n in range(LA):
        frag_reads(n)
    C('first-unit max')
    E('s_nop 7')
    def maxtree(p, dst, tmp):
        s = vS[p]
        E(f'v_max3_f32 v{dst}, v{s}, v{s+1}, v{s+2}')
        E(f'v_max3_f32 v{tmp}, v{s+3}, v{s+4}, v{s+5}')
        E(f'v_max3_f32 v{dst}, v{dst}, v{s+6}, v{s+7}')
        E(f'v_max3_f32 v{tmp}, v{tmp}, v{s+8}, v{s+9}')
        E(f'v_max3_f32 v{dst}, v{dst}, v{s+10}, v{s+11}')
        E(f'v_max3_f32 v{tmp}, v{tmp}, v{s+12}, v{s+13}')
        E(f'v_max3_f32 v{dst}, v{dst}, v{s+14}, v{s+15}')
        E(f'v_max_f32 v{dst}, v{dst}, v{tmp}')
        E(f'v_mov_b32 v{tmp}, v{dst}')
        E('s_nop 1')
        E(f'v_permlane32_swap_b32 v{dst}, v{tmp}')
        E('s_nop 1')
        E(f'v_max_f32 v{dst}, v{dst}, v{tmp}')
    maxtree(0, vT, vT+1)
    for i in range(16):
        E(f'v_sub_f32 v{vNM+i}, 0, v{vT}')
        E(f'v_sub_f32 v{vS[0]+i}, v{vS[0]+i}, v{vT}')

    it_first = {}
    it_last = {}
    for n, op in enumerate(ops):
        it_first.setdefault(op['it'], n)
        it_last[op['it']] = n

    def emit_slots(n0, n1):
        for n in range(n0, n1):
            op = ops[n]
            u = op['it']
            cnt = sum(nlds(ops[k]) for k in range(n+1, min(n+LA, N)))
            E(f's_waitcnt lgkmcnt({cnt})')
            f = vF + 4*(n % NPOOL)
            if op['kind'] == 'qk':
                p = op['unit'] % 2
                mfma(vS[p], f, vQ + 4*op['s'], vNM if op['s'] == 0 else vS[p])
            else:
                p = op['unit'] % 2
                mfma(vO + 16*op['j'], f, vP[p] + 4*op['m'], vO + 16*op['j'])
            if n + LA < N:
                if group_of(ops[n+LA]) != group_of(ops[n+LA-1]):
                    group_switch()
                frag_reads(n + LA)
            if u <= 31:
                so = sm_ops(u % 2)
                ns = it_last[u] - it_first[u] + 1
                k = n - it_first[u]
                lo = (len(so) * k) // ns
                hi = (len(so) * (k+1)) // ns
                for x in so[lo:hi]:
                    E(x)
                if n == it_last[u]:
                    tag = f'{u}'
                    E(f'v_cmp_nge_f32 vcc, s{sTHR}, v{vL}')
                    E(f's_cbranch_vccnz K1_RARE_{tag}')
                    LB(f'K1_BACK_{tag}')
                    rare_sites.append((tag, u % 2))

    rare_sites = []
    emit_slots(it_first[0], it_last[0] + 1)
    E(f's_mov_b32 s{sCNT}, 14')
    LB('K1_LOOP')
    mark = len(L)
    emit_slots(it_first[1], it_last[2] + 1)
    body0 = L[mark:]
    E(f's_sub_u32 s{sCNT}, s{sCNT}, 1')
    E(f's_cmp_lg_u32 s{sCNT}, 0')
    E('s_cbranch_scc1 K1_LOOP')
    save = list(L); rs = list(rare_sites)
    mark = len(L)
    emit_slots(it_first[3], it_last[4] + 1)
    body1 = [x.replace('_3', '_1').replace('_4', '_2') if 'K1_' in x else x for x in L[mark:]]
    assert body0 == body1, 'loop body not periodic'
    del L[len(save):]; rare_sites[:] = rs
    emit_slots(it_first[29], N)

    C('epilogue')
    stamp()
    E('s_nop 15')
    E(f'v_mov_b32 v{vT}, v{vL}')
    E(f'v_mov_b32 v{vT+1}, v{vL}')
    E('s_nop 1')
    E(f'v_permlane32_swap_b32 v{vT}, v{vT+1}')
    E('s_nop 1')
    E(f'v_add_f32 v{vT}, v{vT}, v{vT+1}')
    E(f'v_rcp_f32 v{vT}, v{vT}')
    E(f's_mul_i32 s{sT0}, s{sB}, 7')
    E(f's_add_u32 s{sT0}, s{sT0}, s{sW}')
    E(f's_lshl_b32 s{sT0}, s{sT0}, 8')
    E(f's_lshl_b32 s{sT1}, s{sH}, 3')
    E(f's_add_u32 s{sT0}, s{sT0}, s{sT1}')
    E(f's_lshl_b32 s{sT0}, s{sT0}, 10')
    E(f's_add_u32 s{sT1}, s{sT0}, 4096')
    E(f'v_lshlrev_b32 v{vT+1}, 4, {ln}')
    for sp in range(8):
        j, hf = divmod(sp, 2)
        d = vF + 4*sp
        for e in range(0, 8, 2):
            a = vO + 16*j + 8*hf + e
            E(f'v_mul_f32 v{a}, v{vT}, v{a}')
            E(f'v_mul_f32 v{a+1}, v{vT}, v{a+1}')
            E(f'v_cvt_pk_bf16_f32 v{d+e//2}, v{a}, v{a+1}')
        E(f'buffer_store_dwordx4 {vr(d,4)}, v{vT+1}, {srd(S_WS)}, s{sT0 if sp < 4 else sT1} offen offset:{1024*(sp%4)}')
    stamp()
    if PROF:
        E('s_waitcnt vmcnt(0)')
        stamp()
    prof_dump(sW, S_WS)
    E('s_endpgm')

    for tag, p in rare_sites:
        LB(f'K1_RARE_{tag}')
        E('s_nop 15')
        E('s_nop 3')
        maxtree(p, vT, vT+1)
        E(f'v_max_f32 v{vT}, 0, v{vT}')
        E(f'v_exp_f32 v{vT+1}, -v{vT}')
        E('s_nop 0')
        for i in range(64):
            E(f'v_mul_f32 v{vO+i}, v{vT+1}, v{vO+i}')
        E(f'v_mul_f32 v{vL}, v{vT+1}, v{vLS}')
        for i in range(16):
            E(f'v_sub_f32 v{vNM+i}, v{vNM+i}, v{vT}')
            E(f'v_sub_f32 v{vS[0]+i}, v{vS[0]+i}, v{vT}')
            E(f'v_sub_f32 v{vS[1]+i}, v{vS[1]+i}, v{vT}')
        for x in sm_ops(p)[1:]:
            x = x
            E(x)
        E('s_nop 1')
        E(f's_branch K1_BACK_{tag}')

def k1_loader():
    ln = f'v{vLANE}'
    vKo, vVo, vWo = 2, 6, 7
    C('loader wave')
    E(f'v_lshrrev_b32 v10, 4, {ln}')
    E(f'v_and_b32 v11, 15, {ln}')
    E('v_xor_b32 v12, v11, v10')
    E('v_lshlrev_b32 v12, 4, v12')
    E(f'v_lshl_add_u32 v{vKo}, v10, 8, v12')
    for pp in range(1, 4):
        E(f'v_xor_b32 v{vKo+pp}, {64*pp}, v{vKo}')
    E('v_lshlrev_b32 v12, 2, v10')
    E('v_xor_b32 v12, v11, v12')
    E('v_lshlrev_b32 v12, 4, v12')
    E(f'v_lshl_add_u32 v{vVo}, v10, 8, v12')
    E(f'v_lshl_add_u32 v{vWo}, v10, 13, v12')
    E(f's_lshl_b32 s{sT3}, s{sH}, 8')

    def wq_fill(c):
        sl = xslots(c)[2]
        for p in range(16):
            E(f's_mov_b32 m0, {sl*SLOT + p*1024}')
            E(f's_add_u32 s{sT1}, s{sT3}, {(64*c + 4*p) * 8192}')
            E(f'buffer_load_dwordx4 v{vWo}, {srd(S_WQ)}, s{sT1} offen {NT_W} lds')
    def kv_fill(which, tile, ldsbase):
        for g in range(4):
            E(f's_mov_b32 m0, {ldsbase + g*4096}')
            E(f's_mov_b32 s{sT1}, {tile*16384 + g*4096}')
            for pp in range(4):
                vo = vKo + pp if which == 'K' else vVo
                E(f'buffer_load_dwordx4 v{vo}, {srd(S_K if which=="K" else S_V)}, s{sT1} offen offset:{1024*pp} {NT_KV} lds')
    def group_fill(t):
        pair = (3 + t) % 5
        kv_fill('V', t, pair*PAIR)
        if t + 1 <= 15:
            kv_fill('K', t + 1, pair*PAIR + SLOT)

    wq_fill(0); wq_fill(1); wq_fill(2)
    E('s_waitcnt vmcnt(32)'); BAR()
    for c in range(1, 6):
        E('s_waitcnt vmcnt(16)'); BAR()
        wq_fill(c + 2)
    E('s_waitcnt vmcnt(16)'); BAR()
    kv_fill('K', 0, 2*PAIR + SLOT)
    group_fill(0)
    E('s_waitcnt vmcnt(48)'); BAR()
    E('s_waitcnt vmcnt(32)'); BAR()
    group_fill(1)
    for t in range(0, 16):
        if t <= 13: n = 32
        elif t == 14: n = 16
        else: n = 0
        E(f's_waitcnt vmcnt({n})'); BAR()
        if t + 2 <= 15:
            group_fill(t + 2)
    C('wo fragment re-layout')
    E(f'v_and_b32 v10, 0x13, {ln}')
    E(f'v_bfe_u32 v11, {ln}, 2, 1')
    E(f'v_bfe_u32 v12, {ln}, 3, 1')
    E('v_lshl_add_u32 v10, v11, 3, v10')
    E('v_lshl_add_u32 v10, v12, 2, v10')
    E('v_lshlrev_b32 v10, 1, v10')
    E(f'v_lshrrev_b32 v11, 5, {ln}')
    E('v_lshl_add_u32 v10, v11, 13, v10')
    E(f'v_add_u32 v11, 4096, v10')
    E(f'v_lshlrev_b32 v12, 4, {ln}')
    E(f's_lshl_b32 s{sT0}, s2, 14')
    E(f's_lshl_b32 s{sT2}, s2, 10')
    E(f's_add_u32 s{sT2}, s{sT2}, {WS_W_OFF}')
    for nb in range(16):
        d = 16 + 8*nb
        E(f's_add_u32 s{sT1}, s{sT0}, {nb*64}')
        for e in range(8):
            va = 10 if e < 4 else 11
            E(f'buffer_load_ushort v{d+e}, v{va}, {srd(S_WO)}, s{sT1} offen offset:{1024*(e%4)}')
        if nb % 4 == 3:
            E('s_waitcnt vmcnt(0)')
            for k in range(nb-3, nb+1):
                dd = 16 + 8*k
                for e in range(0, 8, 2):
                    E(f'v_lshl_or_b32 v{160+4*k+e//2}, v{dd+e+1}, 16, v{dd+e}')
                E(f's_add_u32 s{sT1}, s{sT2}, {k*256*1024}')
                E(f'buffer_store_dwordx4 {vr(160+4*k,4)}, v12, {srd(S_WS)}, s{sT1} offen')

def k2():
    L.append('.globl mha_oproj_kernel')
    L.append('.p2align 8')
    L.append('.type mha_oproj_kernel,@function')
    LB('mha_oproj_kernel')
    S_WS2, S_OUT = 4, 8
    E('s_cmp_ge_u32 s2, 224')
    E('s_cbranch_scc1 K2_END')
    E('s_load_dwordx2 s[12:13], s[0:1], 40')
    E('s_load_dwordx2 s[14:15], s[0:1], 56')
    E('s_and_b32 s16, s2, 7')
    E('s_lshr_b32 s17, s2, 3')
    E('s_mul_i32 s18, s17, 37')
    E('s_lshr_b32 s18, s18, 8')
    E('s_mul_i32 s19, s18, 7')
    E('s_sub_u32 s19, s17, s19')
    E('s_lshr_b32 s20, s16, 1')
    E('s_mul_i32 s20, s20, 7')
    E('s_add_u32 s20, s20, s19')
    E('s_and_b32 s21, s16, 1')
    E('s_lshl_b32 s21, s21, 2')
    E('s_add_u32 s21, s21, s18')
    E('v_lshrrev_b32 v193, 6, v0')
    E('v_and_b32 v194, 63, v0')
    E('s_nop 0')
    E('v_readfirstlane_b32 s22, v193')
    E('v_lshlrev_b32 v195, 4, v194')
    E('s_waitcnt lgkmcnt(0)')
    mk_srd(S_WS2, 14, 15, WS_USED)
    mk_srd(S_OUT, 12, 13, 8*224*512*2)
    E('s_lshl_b32 s23, s22, 15')
    E('s_lshl_b32 s24, s20, 19')
    E('s_add_u32 s24, s24, s23')
    E('s_add_u32 s25, s24, 0x40000')
    E('s_lshl_b32 s26, s21, 19')
    E('s_add_u32 s26, s26, s23')
    E(f's_add_u32 s26, s26, {WS_W_OFF}')
    E('s_add_u32 s27, s26, 0x40000')
    ACC = 0
    BUF = 64
    DEPTH = 8
    def loads(ks):
        d = BUF + 16*(ks % DEPTH)
        g, o = divmod(ks, 4)
        if o == 0 and ks > 0:
            for r in range(24, 28):
                E(f's_add_u32 s{r}, s{r}, 4096')
        for st in range(4):
            E(f'buffer_load_dwordx4 {vr(d+4*st,4)}, v195, {srd(S_WS2)}, s{24+st} offen offset:{1024*o}')
    for ks in range(DEPTH - 1):
        loads(ks)
    for ks in range(32):
        if ks + DEPTH - 1 < 32:
            loads(ks + DEPTH - 1)
        rem = min(32 - 1 - ks, DEPTH - 1)
        E(f's_waitcnt vmcnt({4*rem})')
        d = BUF + 16*(ks % DEPTH)
        for a in range(2):
            for b_ in range(2):
                acc = ACC + 16*(2*a + b_)
                mfma(acc, d + 8 + 4*a, d + 4*b_, None if ks == 0 else acc)
    E('s_nop 15')
    E('s_lshl_b32 s23, s22, 14')
    E('v_add_u32 v196, s23, v195')
    for sl in range(8):
        for q4 in range(2):
            r = ACC + 8*sl + 4*q4
            E(f'ds_write_b128 v196, {vr(r,4)} offset:{sl*2048 + q4*1024}')
    E('s_waitcnt lgkmcnt(0)')
    E('s_barrier')
    E('s_lshl_b32 s23, s22, 11')
    E('v_add_u32 v196, s23, v195')
    E('v_add_u32 v197, 0x10000, v196')
    for p in range(8):
        va = 196 if p < 4 else 197
        for q4 in range(2):
            E(f'ds_read_b128 {vr(64+8*p+4*q4,4)}, v{va} offset:{(p%4)*16384 + q4*1024}')
    E('s_lshr_b32 s24, s22, 2')
    E('s_bfe_u32 s25, s22, 0x10001')
    E('s_and_b32 s26, s22, 1')
    E('s_lshl_b32 s27, s20, 6')
    E('s_lshl_b32 s25, s25, 5')
    E('s_add_u32 s27, s27, s25')
    E('s_lshl_b32 s27, s27, 10')
    E('s_lshl_b32 s28, s21, 7')
    E('s_lshl_b32 s24, s24, 6')
    E('s_lshl_b32 s26, s26, 5')
    E('s_add_u32 s27, s27, s28')
    E('s_add_u32 s27, s27, s24')
    E('s_add_u32 s27, s27, s26')
    E('v_and_b32 v198, 31, v194')
    E('v_lshrrev_b32 v199, 5, v194')
    E('v_lshlrev_b32 v199, 4, v199')
    E('v_lshl_add_u32 v198, v198, 10, v199')
    for p in range(1, 8):
        E(f's_waitcnt lgkmcnt({2*(7-p)})')
        for i in range(8):
            E(f'v_add_f32 v{64+i}, v{64+i}, v{64+8*p+i}')
    for i in range(4):
        E(f'v_cvt_pk_bf16_f32 v{200+i}, v{64+2*i}, v{64+2*i+1}')
    E(f'buffer_store_dwordx4 v[200:203], v198, {srd(S_OUT)}, s27 offen')
    LB('K2_END')
    E('s_endpgm')

header()
k1()
k2()
kd('mha_attn_kernel', 240 if PROF else 232, 72)
kd('mha_oproj_kernel', 204, 40)
open(OUT, 'w').write('\n'.join(L) + '\n')
print('wrote', OUT, len(L), 'lines')
```

```python
import sys, struct

OUT = sys.argv[1] if len(sys.argv) > 1 else 'standalone__mha_block_cached__near_ridge.s'

import os
PROF = int(os.environ.get('PROF', '0'))
NT_KV = os.environ.get('NT_KV', 'nt')
NT_X = os.environ.get('NT_X', '')
NT_W = os.environ.get('NT_W', '')
NT_OST = os.environ.get('NT_OST', '').replace('+',' ')
NT_K2 = os.environ.get('NT_K2', '').replace('+',' ')
NT_WOL = os.environ.get('NT_WOL', '').replace('+',' ')
L = []
def E(s): L.append('  ' + s)
def LB(s): L.append(s + ':')
def C(s): L.append('  ; ' + s)

def f32bits(x): return struct.unpack('<I', struct.pack('<f', x))[0]

WS_W_OFF = 16 * 1024 * 1024
WS_USED = WS_W_OFF + 4 * 1024 * 1024
WS_PROF = 32 * 1024 * 1024
if PROF: WS_USED = WS_PROF + 2 * 1024 * 1024
vPROF = 236
sPIDX = 70
def stamp(rt=False):
    if not PROF: return
    E('s_memrealtime s[66:67]' if rt else 's_memtime s[66:67]')
    E('s_waitcnt lgkmcnt(0)')
    E(f's_mov_b32 m0, s{sPIDX}')
    E('s_nop 0')
    E(f'v_writelane_b32 v{vPROF}, s66, m0')
    E(f's_add_u32 s{sPIDX}, s{sPIDX}, 1')
def prof_dump(swave, srdn, extra=0):
    if not PROF: return
    E(f's_lshl_b32 s66, s2, 3')
    E(f's_add_u32 s66, s66, s{swave}')
    E(f's_lshl_b32 s66, s66, 8')
    E(f's_add_u32 s66, s66, {WS_PROF + extra}')
    E(f'v_mbcnt_lo_u32_b32 v{vPROF+1}, -1, 0')
    E(f'v_mbcnt_hi_u32_b32 v{vPROF+1}, -1, v{vPROF+1}')
    E(f'v_lshlrev_b32 v{vPROF+1}, 2, v{vPROF+1}')
    E(f'buffer_store_dword v{vPROF}, v{vPROF+1}, s[{srdn}:{srdn+3}], s66 offen')
def BAR():
    stamp()
    E('s_barrier')
    stamp(PROF == 2)

SLOT = 16384
PAIR = 32768
LDS_BYTES = 163840

S_X, S_K, S_V, S_WQ, S_WS, S_WO = 4, 8, 12, 16, 20, 24
sB, sH, sW = 28, 29, 30
sT0, sT1, sT2, sT3 = 48, 49, 50, 51
sXROW, sWGE4, sW4 = 52, 53, 54
sPAIR, sNXT, sDELTA, sCNT, sTHR = 55, 56, 57, 58, 59
sC = 60
sKOFF, sVOFF, sLDS = 61, 62, 63

def srd(n): return f's[{n}:{n+3}]'
def vr(a, n): return f'v[{a}:{a+n-1}]'

vO = 0
vS = [64, 80]
vNM = 96
vQ = 112
vP = [144, 152]
vF = 160
vKA = 192
vVA = 200
vT = 204
vL, vLS = 212, 213
vXO = 214
vXL = 216
vLANE = 220
vWL = 221
vTMP = 225
vXF = [160, 164]
vWF = [64, 80]
vXA = 192
vWA = 200

LA = 6
NPOOL = 8

def header():
    L.append('; Kernarg layout for this problem (64 bytes, ptrs only, base s[0:1]):')
    L.append(f'; @launch kernel=mha_attn_kernel grid=(256,1,1) block=(512,1,1) lds={LDS_BYTES}')
    L.append('; @launch kernel=mha_oproj_kernel grid=(224,1,1) block=(512,1,1) lds=131072')
    L.append('.amdgcn_target "amdgcn-amd-amdhsa--gfx950"')
    L.append('.text')

def kd(name, vgpr, sgpr):
    L.append('.section .rodata,"a"')
    L.append('.p2align 6')
    L.append(f'.amdhsa_kernel {name}')
    L.append(f'  .amdhsa_next_free_vgpr {vgpr}')
    L.append(f'  .amdhsa_next_free_sgpr {sgpr}')
    L.append(f'  .amdhsa_accum_offset {(vgpr+3)//4*4}')
    L.append('  .amdhsa_group_segment_fixed_size 0')
    L.append('  .amdhsa_kernarg_size 64')
    L.append('  .amdhsa_user_sgpr_count 2')
    L.append('  .amdhsa_user_sgpr_kernarg_segment_ptr 1')
    L.append('  .amdhsa_system_sgpr_workgroup_id_x 1')
    L.append('.end_amdhsa_kernel')
    L.append('.text')

def mk_srd(n, lo, hi, size):
    E(f's_mov_b32 s{n}, s{lo}')
    E(f's_and_b32 s{n+1}, s{hi}, 0xffff')
    E(f's_mov_b32 s{n+2}, {size}')
    E(f's_mov_b32 s{n+3}, 0x20000')

def mfma(d, a, b, c):
    cs = '0' if c is None else vr(c, 16)
    E(f'v_mfma_f32_32x32x16_bf16 {vr(d,16)}, {vr(a,4)}, {vr(b,4)}, {cs}')

def k1():
    L.append('.globl mha_attn_kernel')
    L.append('.p2align 8')
    L.append('.type mha_attn_kernel,@function')
    LB('mha_attn_kernel')
    E('s_cmp_ge_u32 s2, 256')
    E('s_cbranch_scc1 K1_END')
    E('s_load_dwordx16 s[32:47], s[0:1], 0')
    E('s_and_b32 s48, s2, 7')
    E('s_lshr_b32 s49, s2, 3')
    E('s_and_b32 s50, s48, 1')
    E('s_lshl_b32 s50, s50, 2')
    E('s_and_b32 s51, s49, 3')
    E(f's_add_u32 s{sB}, s50, s51')
    E('s_lshr_b32 s50, s48, 1')
    E('s_lshl_b32 s50, s50, 3')
    E('s_lshr_b32 s51, s49, 2')
    E(f's_add_u32 s{sH}, s50, s51')
    E(f'v_lshrrev_b32 v1, 6, v0')
    E(f'v_and_b32 v{vLANE}, 63, v0')
    E('s_nop 0')
    E(f'v_readfirstlane_b32 s{sW}, v1')
    E('s_waitcnt lgkmcnt(0)')
    mk_srd(S_X, 32, 33, 8*224*512*2)
    E(f's_lshl_b32 s48, s{sB}, 5')
    E(f's_add_u32 s48, s48, s{sH}')
    E('s_lshl_b32 s49, s48, 18')
    E('s_lshr_b32 s50, s48, 14')
    E('s_add_u32 s34, s34, s49')
    E('s_addc_u32 s35, s35, s50')
    E('s_add_u32 s36, s36, s49')
    E('s_addc_u32 s37, s37, s50')
    mk_srd(S_K, 34, 35, 262144)
    mk_srd(S_V, 36, 37, 262144)
    mk_srd(S_WQ, 38, 39, 512*4096*2)
    mk_srd(S_WO, 40, 41, 4096*512*2)
    mk_srd(S_WS, 46, 47, WS_USED)
    if PROF:
        E(f's_mov_b32 s{sPIDX}, 0')
        E(f'v_mov_b32 v{vPROF}, 0')
    stamp(True)
    stamp()
    E(f's_cmp_eq_u32 s{sW}, 7')
    E('s_cbranch_scc1 K1_LOADER')
    k1_compute()
    LB('K1_LOADER')
    k1_loader()
    if PROF:
        E('s_waitcnt vmcnt(0)')
        stamp()
        stamp(True)
    prof_dump(sW, S_WS)
    LB('K1_END')
    E('s_endpgm')

def xslots(c):
    return (3*c) % 10, (3*c+1) % 10, (3*c+2) % 10

def x_base_sgpr(c, dst):
    a, b_, _ = xslots(c)
    E(f's_mul_i32 s{dst}, s{sWGE4}, {(b_-a)*SLOT}')
    E(f's_add_u32 s{dst}, s{dst}, {a*SLOT}')
    E(f's_add_u32 s{dst}, s{dst}, s{sW4}')

def x_dma(c):
    x_base_sgpr(c, sT0)
    for p in range(4):
        E(f's_add_u32 m0, s{sT0}, {p*1024}')
        E(f's_add_u32 s{sT1}, s{sXROW}, {p*8192 + c*128}')
        E(f'buffer_load_dwordx4 v{vXO+(p&1)}, {srd(S_X)}, s{sT1} offen {NT_X} lds')

def k1_compute():
    ln = f'v{vLANE}'
    t = vTMP
    C('lane-derived constants')
    E(f's_cmp_ge_u32 s{sW}, 4')
    E(f's_cselect_b32 s{sWGE4}, 1, 0')
    E(f's_and_b32 s{sW4}, s{sW}, 3')
    E(f's_lshl_b32 s{sW4}, s{sW4}, 12')
    E(f's_mul_i32 s{sXROW}, s{sB}, 224')
    E(f's_lshl_b32 s{sT0}, s{sW}, 5')
    E(f's_add_u32 s{sXROW}, s{sXROW}, s{sT0}')
    E(f's_lshl_b32 s{sXROW}, s{sXROW}, 10')
    E(f'v_lshrrev_b32 v{t}, 3, {ln}')
    E(f'v_lshrrev_b32 v{t+1}, 4, {ln}')
    E(f'v_and_b32 v{t+2}, 7, {ln}')
    E(f'v_xor_b32 v{t+2}, v{t+2}, v{t+1}')
    E(f'v_lshlrev_b32 v{t+2}, 4, v{t+2}')
    E(f'v_lshl_add_u32 v{vXO}, v{t}, 10, v{t+2}')
    E(f'v_xor_b32 v{vXO+1}, 64, v{vXO}')
    for c in range(3):
        x_dma(c)
    E(f'v_and_b32 v{t}, 31, {ln}')
    E(f'v_lshrrev_b32 v{t+1}, 5, {ln}')
    E(f'v_bfe_u32 v{t+2}, {ln}, 1, 3')
    E(f'v_xor_b32 v{t+2}, v{t+2}, v{t+1}')
    E(f'v_lshlrev_b32 v{t+2}, 4, v{t+2}')
    E(f'v_lshl_add_u32 v{vXL}, v{t}, 7, v{t+2}')
    for s in range(1, 4):
        E(f'v_xor_b32 v{vXL+s}, {32*s}, v{vXL}')
    E(f'v_bfe_u32 v{t+2}, {ln}, 2, 2')
    E(f'v_bfe_u32 v{t+3}, {ln}, 4, 1')
    E(f'v_and_b32 v{t+4}, 1, {ln}')
    E(f'v_bfe_u32 v{t+5}, {ln}, 1, 1')
    E(f'v_lshlrev_b32 v{t+6}, 6, v{t+2}')
    E(f'v_lshl_add_u32 v{t+6}, v{t+3}, 5, v{t+6}')
    E(f'v_lshl_add_u32 v{t+6}, v{t+4}, 4, v{t+6}')
    E(f'v_lshl_add_u32 v{t+6}, v{t+5}, 3, v{t+6}')
    E(f'v_lshl_add_u32 v{t+6}, v{t+2}, 8, v{t+6}')
    E(f'v_lshl_add_u32 v{vWL}, v{t+1}, 11, v{t+6}')
    for j in range(1, 4):
        E(f'v_xor_b32 v{vWL+j}, {64*j}, v{vWL}')
    E(f's_mov_b32 s{sC}, {hex(f32bits(1.4426950408889634 / (128 ** 0.5)))}')
    E(f's_mov_b32 s{sTHR}, 0x53800000')

    def q_reads(n):
        c, s = divmod(n, 4)
        E(f'ds_read_b128 {vr(vXF[n&1],4)}, v{vXA+s}')
        for j in range(4):
            for r in range(2):
                E(f'ds_read_b64_tr_b16 {vr(vWF[n&1]+4*j+2*r,2)}, v{vWA+j} offset:{4096*s+1024*r}')

    def q_chunk_open(c):
        n_after = 8 if c == 0 else (4 if c < 7 else 0)
        E(f's_waitcnt vmcnt({n_after})')
        BAR()
        if 1 <= c <= 5:
            x_dma(c + 2)
        x_base_sgpr(c, sT0)
        for s in range(4):
            E(f'v_add_u32 v{vXA+s}, s{sT0}, v{vXL+s}')
        for j in range(4):
            E(f'v_add_u32 v{vWA+j}, {xslots(c)[2]*SLOT}, v{vWL+j}')

    C('Q projection')
    q_chunk_open(0)
    q_reads(0)
    for n in range(32):
        E('s_waitcnt lgkmcnt(0)')
        if n + 1 < 32:
            if (n + 1) % 4 == 0:
                q_chunk_open((n + 1) // 4)
            q_reads(n + 1)
        for j in range(4):
            mfma(vO + 16*j, vWF[n&1] + 4*j, vXF[n&1], None if n == 0 else vO + 16*j)

    C('attention addresses')
    E(f'v_and_b32 v{t+2}, 15, {ln}')
    E(f'v_xor_b32 v{t+2}, v{t+2}, v{t+1}')
    E(f'v_lshlrev_b32 v{t+2}, 4, v{t+2}')
    E(f'v_lshl_add_u32 v{t+2}, v{t}, 8, v{t+2}')
    E(f'v_add_u32 v{vKA}, {2*PAIR}, v{t+2}')
    for s in range(1, 8):
        E(f'v_xor_b32 v{vKA+s}, {32*s}, v{vKA}')
    E(f'v_lshl_add_u32 v{t+3}, v{t+1}, 10, v{t+6}')
    E(f'v_add_u32 v{vVA}, {2*PAIR}, v{t+3}')
    for j in range(1, 4):
        E(f'v_xor_b32 v{vVA+j}, {64*j}, v{vVA}')
    E(f's_mov_b32 s{sPAIR}, {2*PAIR}')
    BAR()
    for s in range(8):
        E(f'ds_read_b128 {vr(vF+4*s,4)}, v{vKA+s} offset:{SLOT}')
    C('Q scale + convert')
    E('s_nop 4')
    for j in range(4):
        for hf in range(2):
            sp = 2*j + hf
            for e in range(0, 8, 2):
                a = vO + 16*j + 8*hf + e
                E(f'v_mul_f32 v{a}, s{sC}, v{a}')
                E(f'v_mul_f32 v{a+1}, s{sC}, v{a+1}')
                E(f'v_cvt_pk_bf16_f32 v{vQ+4*sp+e//2}, v{a}, v{a+1}')
    for i in range(64):
        E(f'v_mov_b32 v{vO+i}, 0')
    E(f'v_mov_b32 v{vL}, 0')
    C('QK(0)')
    for s in range(8):
        E(f's_waitcnt lgkmcnt({7-s})')
        mfma(vS[0], vF + 4*s, vQ + 4*s, None if s == 0 else vS[0])

    ops = []
    for u in range(32):
        if u + 1 <= 31:
            for s in range(8):
                ops.append(dict(kind='qk', unit=u+1, s=s, it=u))
        if u >= 1:
            for m in range(2):
                for j in range(4):
                    ops.append(dict(kind='pv', unit=u-1, m=m, j=j, it=u))
    for m in range(2):
        for j in range(4):
            ops.append(dict(kind='pv', unit=31, m=m, j=j, it=32))
    N = len(ops)
    def group_of(op):
        return op['unit'] // 2 - 1 if op['kind'] == 'qk' else op['unit'] // 2
    def nlds(op): return 1 if op['kind'] == 'qk' else 2
    def frag_reads(n):
        op = ops[n]; f = vF + 4*(n % NPOOL)
        if op['kind'] == 'qk':
            E(f'ds_read_b128 {vr(f,4)}, v{vKA+op["s"]} offset:{SLOT + 8192*(op["unit"]%2)}')
        else:
            mp = 2*(op['unit'] % 2) + op['m']
            E(f'ds_read_b64_tr_b16 {vr(f,2)}, v{vVA+op["j"]} offset:{4096*mp}')
            E(f'ds_read_b64_tr_b16 {vr(f+2,2)}, v{vVA+op["j"]} offset:{4096*mp+2048}')
    def group_switch():
        E(f's_add_u32 s{sNXT}, s{sPAIR}, {PAIR}')
        E(f's_cmp_eq_u32 s{sNXT}, {LDS_BYTES}')
        E(f's_cselect_b32 s{sNXT}, 0, s{sNXT}')
        E(f's_sub_u32 s{sDELTA}, s{sNXT}, s{sPAIR}')
        E(f's_mov_b32 s{sPAIR}, s{sNXT}')
        for s in range(8):
            E(f'v_add_u32 v{vKA+s}, s{sDELTA}, v{vKA+s}')
        for j in range(4):
            E(f'v_add_u32 v{vVA+j}, s{sDELTA}, v{vVA+j}')
        BAR()
    def sm_ops(p):
        o = [f'v_mov_b32 v{vLS}, v{vL}']
        for k in range(8):
            t0 = vT + 2*(k % 4)
            o.append(f'v_exp_f32 v{t0}, v{vS[p]+2*k}')
            o.append(f'v_exp_f32 v{t0+1}, v{vS[p]+2*k+1}')
            o.append(f'v_add_f32 v{vL}, v{vL}, v{t0}')
            o.append(f'v_add_f32 v{vL}, v{vL}, v{t0+1}')
            o.append(f'v_cvt_pk_bf16_f32 v{vP[p]+k}, v{t0}, v{t0+1}')
        return o

    for n in range(LA):
        frag_reads(n)
    C('first-unit max')
    E('s_nop 7')
    def maxtree(p, dst, tmp):
        s = vS[p]
        E(f'v_max3_f32 v{dst}, v{s}, v{s+1}, v{s+2}')
        E(f'v_max3_f32 v{tmp}, v{s+3}, v{s+4}, v{s+5}')
        E(f'v_max3_f32 v{dst}, v{dst}, v{s+6}, v{s+7}')
        E(f'v_max3_f32 v{tmp}, v{tmp}, v{s+8}, v{s+9}')
        E(f'v_max3_f32 v{dst}, v{dst}, v{s+10}, v{s+11}')
        E(f'v_max3_f32 v{tmp}, v{tmp}, v{s+12}, v{s+13}')
        E(f'v_max3_f32 v{dst}, v{dst}, v{s+14}, v{s+15}')
        E(f'v_max_f32 v{dst}, v{dst}, v{tmp}')
        E(f'v_mov_b32 v{tmp}, v{dst}')
        E('s_nop 1')
        E(f'v_permlane32_swap_b32 v{dst}, v{tmp}')
        E('s_nop 1')
        E(f'v_max_f32 v{dst}, v{dst}, v{tmp}')
    maxtree(0, vT, vT+1)
    for i in range(16):
        E(f'v_sub_f32 v{vNM+i}, 0, v{vT}')
        E(f'v_sub_f32 v{vS[0]+i}, v{vS[0]+i}, v{vT}')

    it_first = {}
    it_last = {}
    for n, op in enumerate(ops):
        it_first.setdefault(op['it'], n)
        it_last[op['it']] = n

    def emit_slots(n0, n1):
        for n in range(n0, n1):
            op = ops[n]
            u = op['it']
            cnt = sum(nlds(ops[k]) for k in range(n+1, min(n+LA, N)))
            E(f's_waitcnt lgkmcnt({cnt})')
            f = vF + 4*(n % NPOOL)
            if op['kind'] == 'qk':
                p = op['unit'] % 2
                mfma(vS[p], f, vQ + 4*op['s'], vNM if op['s'] == 0 else vS[p])
            else:
                p = op['unit'] % 2
                mfma(vO + 16*op['j'], f, vP[p] + 4*op['m'], vO + 16*op['j'])
            if n + LA < N:
                if group_of(ops[n+LA]) != group_of(ops[n+LA-1]):
                    group_switch()
                frag_reads(n + LA)
            if u <= 31:
                so = sm_ops(u % 2)
                ns = it_last[u] - it_first[u] + 1
                k = n - it_first[u]
                lo = (len(so) * k) // ns
                hi = (len(so) * (k+1)) // ns
                for x in so[lo:hi]:
                    E(x)
                if n == it_last[u]:
                    tag = f'{u}'
                    E(f'v_cmp_nge_f32 vcc, s{sTHR}, v{vL}')
                    E(f's_cbranch_vccnz K1_RARE_{tag}')
                    LB(f'K1_BACK_{tag}')
                    rare_sites.append((tag, u % 2))

    rare_sites = []
    emit_slots(it_first[0], it_last[0] + 1)
    E(f's_mov_b32 s{sCNT}, 14')
    LB('K1_LOOP')
    mark = len(L)
    emit_slots(it_first[1], it_last[2] + 1)
    body0 = L[mark:]
    E(f's_sub_u32 s{sCNT}, s{sCNT}, 1')
    E(f's_cmp_lg_u32 s{sCNT}, 0')
    E('s_cbranch_scc1 K1_LOOP')
    save = list(L); rs = list(rare_sites)
    mark = len(L)
    emit_slots(it_first[3], it_last[4] + 1)
    body1 = [x.replace('_3', '_1').replace('_4', '_2') if 'K1_' in x else x for x in L[mark:]]
    assert body0 == body1, 'loop body not periodic'
    del L[len(save):]; rare_sites[:] = rs
    emit_slots(it_first[29], N)

    C('epilogue')
    stamp()
    E('s_nop 15')
    E(f'v_mov_b32 v{vT}, v{vL}')
    E(f'v_mov_b32 v{vT+1}, v{vL}')
    E('s_nop 1')
    E(f'v_permlane32_swap_b32 v{vT}, v{vT+1}')
    E('s_nop 1')
    E(f'v_add_f32 v{vT}, v{vT}, v{vT+1}')
    E(f'v_rcp_f32 v{vT}, v{vT}')
    E(f's_mul_i32 s{sT0}, s{sB}, 7')
    E(f's_add_u32 s{sT0}, s{sT0}, s{sW}')
    E(f's_lshl_b32 s{sT0}, s{sT0}, 8')
    E(f's_lshl_b32 s{sT1}, s{sH}, 3')
    E(f's_add_u32 s{sT0}, s{sT0}, s{sT1}')
    E(f's_lshl_b32 s{sT0}, s{sT0}, 10')
    E(f's_add_u32 s{sT1}, s{sT0}, 4096')
    E(f'v_lshlrev_b32 v{vT+1}, 4, {ln}')
    for sp in range(8):
        j, hf = divmod(sp, 2)
        d = vF + 4*sp
        for e in range(0, 8, 2):
            a = vO + 16*j + 8*hf + e
            E(f'v_mul_f32 v{a}, v{vT}, v{a}')
            E(f'v_mul_f32 v{a+1}, v{vT}, v{a+1}')
            E(f'v_cvt_pk_bf16_f32 v{d+e//2}, v{a}, v{a+1}')
        E(f'buffer_store_dwordx4 {vr(d,4)}, v{vT+1}, {srd(S_WS)}, s{sT0 if sp < 4 else sT1} offen offset:{1024*(sp%4)} {NT_OST}')
    stamp()
    if PROF:
        E('s_waitcnt vmcnt(0)')
        stamp()
        stamp(True)
    prof_dump(sW, S_WS)
    E('s_endpgm')

    for tag, p in rare_sites:
        LB(f'K1_RARE_{tag}')
        E('s_nop 15')
        E('s_nop 3')
        maxtree(p, vT, vT+1)
        E(f'v_max_f32 v{vT}, 0, v{vT}')
        E(f'v_exp_f32 v{vT+1}, -v{vT}')
        E('s_nop 0')
        for i in range(64):
            E(f'v_mul_f32 v{vO+i}, v{vT+1}, v{vO+i}')
        E(f'v_mul_f32 v{vL}, v{vT+1}, v{vLS}')
        for i in range(16):
            E(f'v_sub_f32 v{vNM+i}, v{vNM+i}, v{vT}')
            E(f'v_sub_f32 v{vS[0]+i}, v{vS[0]+i}, v{vT}')
            E(f'v_sub_f32 v{vS[1]+i}, v{vS[1]+i}, v{vT}')
        for x in sm_ops(p)[1:]:
            x = x
            E(x)
        E('s_nop 1')
        E(f's_branch K1_BACK_{tag}')

def k1_loader():
    ln = f'v{vLANE}'
    vKo, vVo, vWo = 2, 6, 7
    C('loader wave')
    E(f'v_lshrrev_b32 v10, 4, {ln}')
    E(f'v_and_b32 v11, 15, {ln}')
    E('v_xor_b32 v12, v11, v10')
    E('v_lshlrev_b32 v12, 4, v12')
    E(f'v_lshl_add_u32 v{vKo}, v10, 8, v12')
    for pp in range(1, 4):
        E(f'v_xor_b32 v{vKo+pp}, {64*pp}, v{vKo}')
    E('v_lshlrev_b32 v12, 2, v10')
    E('v_xor_b32 v12, v11, v12')
    E('v_lshlrev_b32 v12, 4, v12')
    E(f'v_lshl_add_u32 v{vVo}, v10, 8, v12')
    E(f'v_lshl_add_u32 v{vWo}, v10, 13, v12')
    E(f's_lshl_b32 s{sT3}, s{sH}, 8')

    def wq_fill(c):
        sl = xslots(c)[2]
        for p in range(16):
            E(f's_mov_b32 m0, {sl*SLOT + p*1024}')
            E(f's_add_u32 s{sT1}, s{sT3}, {(64*c + 4*p) * 8192}')
            E(f'buffer_load_dwordx4 v{vWo}, {srd(S_WQ)}, s{sT1} offen {NT_W} lds')
    def kv_fill(which, tile, ldsbase):
        for g in range(4):
            E(f's_mov_b32 m0, {ldsbase + g*4096}')
            E(f's_mov_b32 s{sT1}, {tile*16384 + g*4096}')
            for pp in range(4):
                vo = vKo + pp if which == 'K' else vVo
                E(f'buffer_load_dwordx4 v{vo}, {srd(S_K if which=="K" else S_V)}, s{sT1} offen offset:{1024*pp} {NT_KV} lds')
    def group_fill(t):
        pair = (3 + t) % 5
        kv_fill('V', t, pair*PAIR)
        if t + 1 <= 15:
            kv_fill('K', t + 1, pair*PAIR + SLOT)

    wq_fill(0); wq_fill(1); wq_fill(2)
    E('s_waitcnt vmcnt(32)'); BAR()
    for c in range(1, 6):
        E('s_waitcnt vmcnt(16)'); BAR()
        wq_fill(c + 2)
    E('s_waitcnt vmcnt(16)'); BAR()
    kv_fill('K', 0, 2*PAIR + SLOT)
    group_fill(0)
    E('s_waitcnt vmcnt(48)'); BAR()
    E(f'v_and_b32 v10, 0x13, {ln}')
    E(f'v_bfe_u32 v11, {ln}, 2, 1')
    E(f'v_bfe_u32 v12, {ln}, 3, 1')
    E('v_lshl_add_u32 v10, v11, 3, v10')
    E('v_lshl_add_u32 v10, v12, 2, v10')
    E('v_lshlrev_b32 v10, 1, v10')
    E(f'v_lshrrev_b32 v11, 5, {ln}')
    E('v_lshl_add_u32 v10, v11, 13, v10')
    E(f'v_add_u32 v11, 4096, v10')
    E(f'v_lshlrev_b32 v12, 4, {ln}')
    E(f's_lshl_b32 s{sT0}, s2, 14')
    E(f's_lshl_b32 s{sT2}, s2, 10')
    E(f's_add_u32 s{sT2}, s{sT2}, {WS_W_OFF}')
    def wo_loads(nb):
        d = 16 + 8*nb
        E(f's_add_u32 s{sT1}, s{sT0}, {nb*64}')
        for e in range(8):
            va = 10 if e < 4 else 11
            E(f'buffer_load_ushort v{d+e}, v{va}, {srd(S_WO)}, s{sT1} offen offset:{1024*(e%4)} {NT_WOL}')
    def wo_store(k):
        dd = 16 + 8*k
        for e in range(0, 8, 2):
            E(f'v_lshl_or_b32 v{160+4*k+e//2}, v{dd+e+1}, 16, v{dd+e}')
        E(f's_add_u32 s{sT1}, s{sT2}, {k*256*1024}')
        E(f'buffer_store_dwordx4 {vr(160+4*k,4)}, v12, {srd(S_WS)}, s{sT1} offen {NT_OST}')
    log = ['K0']*16 + ['g0']*32
    def wait_for(tag):
        last = max(i for i, x in enumerate(log) if x == tag)
        n = len(log) - 1 - last
        E(f's_waitcnt vmcnt({min(n, 63)})')
    wait_for('K0'); BAR()
    group_fill(1); log += ['g1']*32
    for t in range(0, 16):
        wait_for(f'g{t}'); BAR()
        if 2 <= t <= 9:
            wo_store(2*(t-2)); wo_store(2*(t-2)+1); log += ['s']*2
        if t <= 7:
            wo_loads(2*t); wo_loads(2*t+1); log += ['w']*16
        if t + 2 <= 15:
            group_fill(t + 2); log += [f'g{t+2}']*(32 if t + 2 < 15 else 16)

def k2():
    L.append('.globl mha_oproj_kernel')
    L.append('.p2align 8')
    L.append('.type mha_oproj_kernel,@function')
    LB('mha_oproj_kernel')
    S_WS2, S_OUT = 4, 8
    E('s_cmp_ge_u32 s2, 224')
    E('s_cbranch_scc1 K2_END')
    E('s_load_dwordx2 s[12:13], s[0:1], 40')
    E('s_load_dwordx2 s[14:15], s[0:1], 56')
    E('s_and_b32 s16, s2, 7')
    E('s_lshr_b32 s17, s2, 3')
    E('s_mul_i32 s18, s17, 37')
    E('s_lshr_b32 s18, s18, 8')
    E('s_mul_i32 s19, s18, 7')
    E('s_sub_u32 s19, s17, s19')
    E('s_lshr_b32 s20, s16, 1')
    E('s_mul_i32 s20, s20, 7')
    E('s_add_u32 s20, s20, s19')
    E('s_and_b32 s21, s16, 1')
    E('s_lshl_b32 s21, s21, 2')
    E('s_add_u32 s21, s21, s18')
    E('v_lshrrev_b32 v193, 6, v0')
    E('v_and_b32 v194, 63, v0')
    E('s_nop 0')
    E('v_readfirstlane_b32 s22, v193')
    E('v_lshlrev_b32 v195, 4, v194')
    E('s_waitcnt lgkmcnt(0)')
    mk_srd(S_WS2, 14, 15, WS_USED)
    mk_srd(S_OUT, 12, 13, 8*224*512*2)
    if PROF:
        E(f's_mov_b32 s{sPIDX}, 0')
        E(f'v_mov_b32 v{vPROF}, 0')
    stamp(True)
    stamp()
    E('s_lshl_b32 s23, s22, 15')
    E('s_lshl_b32 s24, s20, 19')
    E('s_add_u32 s24, s24, s23')
    E('s_add_u32 s25, s24, 0x40000')
    E('s_lshl_b32 s26, s21, 19')
    E('s_add_u32 s26, s26, s23')
    E(f's_add_u32 s26, s26, {WS_W_OFF}')
    E('s_add_u32 s27, s26, 0x40000')
    ACC = 0
    BUF = 64
    DEPTH = 8
    def loads(ks):
        d = BUF + 16*(ks % DEPTH)
        g, o = divmod(ks, 4)
        if o == 0 and ks > 0:
            for r in range(24, 28):
                E(f's_add_u32 s{r}, s{r}, 4096')
        for st in range(4):
            E(f'buffer_load_dwordx4 {vr(d+4*st,4)}, v195, {srd(S_WS2)}, s{24+st} offen offset:{1024*o} {NT_K2}')
    for ks in range(DEPTH - 1):
        loads(ks)
    for ks in range(32):
        if ks + DEPTH - 1 < 32:
            loads(ks + DEPTH - 1)
        rem = min(32 - 1 - ks, DEPTH - 1)
        E(f's_waitcnt vmcnt({4*rem})')
        d = BUF + 16*(ks % DEPTH)
        for a in range(2):
            for b_ in range(2):
                acc = ACC + 16*(2*a + b_)
                mfma(acc, d + 8 + 4*a, d + 4*b_, None if ks == 0 else acc)
    stamp()
    E('s_nop 15')
    E('s_lshl_b32 s23, s22, 14')
    E('v_add_u32 v196, s23, v195')
    for sl in range(8):
        for q4 in range(2):
            r = ACC + 8*sl + 4*q4
            E(f'ds_write_b128 v196, {vr(r,4)} offset:{sl*2048 + q4*1024}')
    E('s_waitcnt lgkmcnt(0)')
    E('s_barrier')
    E('s_lshl_b32 s23, s22, 11')
    E('v_add_u32 v196, s23, v195')
    E('v_add_u32 v197, 0x10000, v196')
    for p in range(8):
        va = 196 if p < 4 else 197
        for q4 in range(2):
            E(f'ds_read_b128 {vr(64+8*p+4*q4,4)}, v{va} offset:{(p%4)*16384 + q4*1024}')
    E('s_lshr_b32 s24, s22, 2')
    E('s_bfe_u32 s25, s22, 0x10001')
    E('s_and_b32 s26, s22, 1')
    E('s_lshl_b32 s27, s20, 6')
    E('s_lshl_b32 s25, s25, 5')
    E('s_add_u32 s27, s27, s25')
    E('s_lshl_b32 s27, s27, 10')
    E('s_lshl_b32 s28, s21, 7')
    E('s_lshl_b32 s24, s24, 6')
    E('s_lshl_b32 s26, s26, 5')
    E('s_add_u32 s27, s27, s28')
    E('s_add_u32 s27, s27, s24')
    E('s_add_u32 s27, s27, s26')
    E('v_and_b32 v198, 31, v194')
    E('v_lshrrev_b32 v199, 5, v194')
    E('v_lshlrev_b32 v199, 4, v199')
    E('v_lshl_add_u32 v198, v198, 10, v199')
    for p in range(1, 8):
        E(f's_waitcnt lgkmcnt({2*(7-p)})')
        for i in range(8):
            E(f'v_add_f32 v{64+i}, v{64+i}, v{64+8*p+i}')
    for i in range(4):
        E(f'v_cvt_pk_bf16_f32 v{200+i}, v{64+2*i}, v{64+2*i+1}')
    E(f'buffer_store_dwordx4 v[200:203], v198, {srd(S_OUT)}, s27 offen')
    if PROF:
        E('s_waitcnt vmcnt(0)')
        stamp()
        stamp(True)
    prof_dump(22, S_WS2, 1024*1024)
    LB('K2_END')
    E('s_endpgm')

header()
k1()
k2()
kd('mha_attn_kernel', 240 if PROF else 232, 72)
kd('mha_oproj_kernel', 240 if PROF else 204, 72 if PROF else 40)
open(OUT, 'w').write('\n'.join(L) + '\n')
print('wrote', OUT, len(L), 'lines')
```

```python
import sys, struct

OUT = sys.argv[1] if len(sys.argv) > 1 else 'standalone__mha_block_cached__near_ridge.s'

import os
PROF = int(os.environ.get('PROF', '0'))
DBG = int(os.environ.get('DBG', '0'))
NT_KV = os.environ.get('NT_KV', 'nt')
NT_X = os.environ.get('NT_X', '')
NT_W = os.environ.get('NT_W', '')
NT_OST = os.environ.get('NT_OST', '').replace('+',' ')
NT_K2 = os.environ.get('NT_K2', '').replace('+',' ')
NT_WOL = os.environ.get('NT_WOL', '').replace('+',' ')
L = []
def E(s): L.append('  ' + s)
def LB(s): L.append(s + ':')
def C(s): L.append('  ; ' + s)

def f32bits(x): return struct.unpack('<I', struct.pack('<f', x))[0]

WS_W_OFF = 16 * 1024 * 1024
WS_USED = WS_W_OFF + 4 * 1024 * 1024
WS_PROF = 32 * 1024 * 1024
if PROF: WS_USED = WS_PROF + 2 * 1024 * 1024
vPROF = 236
sPIDX = 70
def stamp(rt=False):
    if not PROF: return
    E('s_memrealtime s[66:67]' if rt else 's_memtime s[66:67]')
    E('s_waitcnt lgkmcnt(0)')
    E(f's_mov_b32 m0, s{sPIDX}')
    E('s_nop 0')
    E(f'v_writelane_b32 v{vPROF}, s66, m0')
    E(f's_add_u32 s{sPIDX}, s{sPIDX}, 1')
def prof_dump(swave, srdn, extra=0):
    if not PROF: return
    E(f's_lshl_b32 s66, s2, 3')
    E(f's_add_u32 s66, s66, s{swave}')
    E(f's_lshl_b32 s66, s66, 8')
    E(f's_add_u32 s66, s66, {WS_PROF + extra}')
    E(f'v_mbcnt_lo_u32_b32 v{vPROF+1}, -1, 0')
    E(f'v_mbcnt_hi_u32_b32 v{vPROF+1}, -1, v{vPROF+1}')
    E(f'v_lshlrev_b32 v{vPROF+1}, 2, v{vPROF+1}')
    E(f'buffer_store_dword v{vPROF}, v{vPROF+1}, s[{srdn}:{srdn+3}], s66 offen')
def dbg_begin():
    if not DBG: return
    E('s_memrealtime s[80:81]')
    E('s_memtime s[82:83]')
    E('s_load_dwordx2 s[84:85], s[0:1], 48')
    E('s_waitcnt lgkmcnt(0)')
    E('s_mov_b32 s88, s84')
    E('s_and_b32 s89, s85, 0xffff')
    E('s_mov_b32 s90, 256')
    E('s_mov_b32 s91, 0x20000')
def dbg_end(v, base):
    if not DBG: return
    E('s_waitcnt vmcnt(0)')
    E('s_memrealtime s[84:85]')
    E('s_memtime s[86:87]')
    E('s_waitcnt lgkmcnt(0)')
    E('s_not_b32 s80, s80')
    E('s_sub_u32 s86, s86, s82')
    E(f'v_mov_b32 v{v}, 0')
    E(f'v_mov_b32 v{v+1}, s84')
    E(f'v_mov_b32 v{v+2}, s80')
    E(f'v_mov_b32 v{v+3}, s86')
    E('s_mov_b64 exec, 1')
    E(f'buffer_atomic_umax v{v+1}, v{v}, s[88:91], 0 offen offset:{base}')
    E(f'buffer_atomic_umax v{v+2}, v{v}, s[88:91], 0 offen offset:{base+4}')
    E(f'buffer_atomic_umax v{v+3}, v{v}, s[88:91], 0 offen offset:{base+8}')
def BAR():
    stamp()
    E('s_barrier')
    stamp(PROF == 2)

SLOT = 16384
PAIR = 32768
LDS_BYTES = 163840

S_X, S_K, S_V, S_WQ, S_WS, S_WO = 4, 8, 12, 16, 20, 24
sB, sH, sW = 28, 29, 30
sT0, sT1, sT2, sT3 = 48, 49, 50, 51
sXROW, sWGE4, sW4 = 52, 53, 54
sPAIR, sNXT, sDELTA, sCNT, sTHR = 55, 56, 57, 58, 59
sC = 60
sKOFF, sVOFF, sLDS = 61, 62, 63

def srd(n): return f's[{n}:{n+3}]'
def vr(a, n): return f'v[{a}:{a+n-1}]'

vO = 0
vS = [64, 80]
vNM = 96
vQ = 112
vP = [144, 152]
vF = 160
vKA = 192
vVA = 200
vT = 204
vL, vLS = 212, 213
vXO = 214
vXL = 216
vLANE = 220
vWL = 221
vTMP = 225
vXF = [160, 164]
vWF = [64, 80]
vXA = 192
vWA = 200

LA = 6
NPOOL = 8

def header():
    L.append('; Kernarg layout for this problem (64 bytes, ptrs only, base s[0:1]):')
    L.append(f'; @launch kernel=mha_attn_kernel grid=(256,1,1) block=(512,1,1) lds={LDS_BYTES}')
    L.append('; @launch kernel=mha_oproj_kernel grid=(224,1,1) block=(512,1,1) lds=131072')
    L.append('.amdgcn_target "amdgcn-amd-amdhsa--gfx950"')
    L.append('.text')

def kd(name, vgpr, sgpr):
    L.append('.section .rodata,"a"')
    L.append('.p2align 6')
    L.append(f'.amdhsa_kernel {name}')
    L.append(f'  .amdhsa_next_free_vgpr {vgpr}')
    L.append(f'  .amdhsa_next_free_sgpr {sgpr}')
    L.append(f'  .amdhsa_accum_offset {(vgpr+3)//4*4}')
    L.append('  .amdhsa_group_segment_fixed_size 0')
    L.append('  .amdhsa_kernarg_size 64')
    L.append('  .amdhsa_user_sgpr_count 2')
    L.append('  .amdhsa_user_sgpr_kernarg_segment_ptr 1')
    L.append('  .amdhsa_system_sgpr_workgroup_id_x 1')
    L.append('.end_amdhsa_kernel')
    L.append('.text')

def mk_srd(n, lo, hi, size):
    E(f's_mov_b32 s{n}, s{lo}')
    E(f's_and_b32 s{n+1}, s{hi}, 0xffff')
    E(f's_mov_b32 s{n+2}, {size}')
    E(f's_mov_b32 s{n+3}, 0x20000')

def mfma(d, a, b, c):
    cs = '0' if c is None else vr(c, 16)
    E(f'v_mfma_f32_32x32x16_bf16 {vr(d,16)}, {vr(a,4)}, {vr(b,4)}, {cs}')

def k1():
    L.append('.globl mha_attn_kernel')
    L.append('.p2align 8')
    L.append('.type mha_attn_kernel,@function')
    LB('mha_attn_kernel')
    E('s_cmp_ge_u32 s2, 256')
    E('s_cbranch_scc1 K1_END')
    dbg_begin()
    E('s_load_dwordx16 s[32:47], s[0:1], 0')
    E('s_and_b32 s48, s2, 7')
    E('s_lshr_b32 s49, s2, 3')
    E('s_and_b32 s50, s48, 1')
    E('s_lshl_b32 s50, s50, 2')
    E('s_and_b32 s51, s49, 3')
    E(f's_add_u32 s{sB}, s50, s51')
    E('s_lshr_b32 s50, s48, 1')
    E('s_lshl_b32 s50, s50, 3')
    E('s_lshr_b32 s51, s49, 2')
    E(f's_add_u32 s{sH}, s50, s51')
    E(f'v_lshrrev_b32 v1, 6, v0')
    E(f'v_and_b32 v{vLANE}, 63, v0')
    E('s_nop 0')
    E(f'v_readfirstlane_b32 s{sW}, v1')
    E('s_waitcnt lgkmcnt(0)')
    mk_srd(S_X, 32, 33, 8*224*512*2)
    E(f's_lshl_b32 s48, s{sB}, 5')
    E(f's_add_u32 s48, s48, s{sH}')
    E('s_lshl_b32 s49, s48, 18')
    E('s_lshr_b32 s50, s48, 14')
    E('s_add_u32 s34, s34, s49')
    E('s_addc_u32 s35, s35, s50')
    E('s_add_u32 s36, s36, s49')
    E('s_addc_u32 s37, s37, s50')
    mk_srd(S_K, 34, 35, 262144)
    mk_srd(S_V, 36, 37, 262144)
    mk_srd(S_WQ, 38, 39, 512*4096*2)
    mk_srd(S_WO, 40, 41, 4096*512*2)
    mk_srd(S_WS, 46, 47, WS_USED)
    if PROF:
        E(f's_mov_b32 s{sPIDX}, 0')
        E(f'v_mov_b32 v{vPROF}, 0')
    stamp(True)
    stamp()
    E(f's_cmp_eq_u32 s{sW}, 7')
    E('s_cbranch_scc1 K1_LOADER')
    k1_compute()
    LB('K1_LOADER')
    k1_loader()
    if PROF:
        E('s_waitcnt vmcnt(0)')
        stamp()
        stamp(True)
    prof_dump(sW, S_WS)
    dbg_end(0, 16)
    LB('K1_END')
    E('s_endpgm')

def xslots(c):
    return (3*c) % 10, (3*c+1) % 10, (3*c+2) % 10

def x_base_sgpr(c, dst):
    a, b_, _ = xslots(c)
    E(f's_mul_i32 s{dst}, s{sWGE4}, {(b_-a)*SLOT}')
    E(f's_add_u32 s{dst}, s{dst}, {a*SLOT}')
    E(f's_add_u32 s{dst}, s{dst}, s{sW4}')

def x_dma(c):
    x_base_sgpr(c, sT0)
    for p in range(4):
        E(f's_add_u32 m0, s{sT0}, {p*1024}')
        E(f's_add_u32 s{sT1}, s{sXROW}, {p*8192 + c*128}')
        E(f'buffer_load_dwordx4 v{vXO+(p&1)}, {srd(S_X)}, s{sT1} offen {NT_X} lds')

def k1_compute():
    ln = f'v{vLANE}'
    t = vTMP
    C('lane-derived constants')
    E(f's_cmp_ge_u32 s{sW}, 4')
    E(f's_cselect_b32 s{sWGE4}, 1, 0')
    E(f's_and_b32 s{sW4}, s{sW}, 3')
    E(f's_lshl_b32 s{sW4}, s{sW4}, 12')
    E(f's_mul_i32 s{sXROW}, s{sB}, 224')
    E(f's_lshl_b32 s{sT0}, s{sW}, 5')
    E(f's_add_u32 s{sXROW}, s{sXROW}, s{sT0}')
    E(f's_lshl_b32 s{sXROW}, s{sXROW}, 10')
    E(f'v_lshrrev_b32 v{t}, 3, {ln}')
    E(f'v_lshrrev_b32 v{t+1}, 4, {ln}')
    E(f'v_and_b32 v{t+2}, 7, {ln}')
    E(f'v_xor_b32 v{t+2}, v{t+2}, v{t+1}')
    E(f'v_lshlrev_b32 v{t+2}, 4, v{t+2}')
    E(f'v_lshl_add_u32 v{vXO}, v{t}, 10, v{t+2}')
    E(f'v_xor_b32 v{vXO+1}, 64, v{vXO}')
    for c in range(3):
        x_dma(c)
    E(f'v_and_b32 v{t}, 31, {ln}')
    E(f'v_lshrrev_b32 v{t+1}, 5, {ln}')
    E(f'v_bfe_u32 v{t+2}, {ln}, 1, 3')
    E(f'v_xor_b32 v{t+2}, v{t+2}, v{t+1}')
    E(f'v_lshlrev_b32 v{t+2}, 4, v{t+2}')
    E(f'v_lshl_add_u32 v{vXL}, v{t}, 7, v{t+2}')
    for s in range(1, 4):
        E(f'v_xor_b32 v{vXL+s}, {32*s}, v{vXL}')
    E(f'v_bfe_u32 v{t+2}, {ln}, 2, 2')
    E(f'v_bfe_u32 v{t+3}, {ln}, 4, 1')
    E(f'v_and_b32 v{t+4}, 1, {ln}')
    E(f'v_bfe_u32 v{t+5}, {ln}, 1, 1')
    E(f'v_lshlrev_b32 v{t+6}, 6, v{t+2}')
    E(f'v_lshl_add_u32 v{t+6}, v{t+3}, 5, v{t+6}')
    E(f'v_lshl_add_u32 v{t+6}, v{t+4}, 4, v{t+6}')
    E(f'v_lshl_add_u32 v{t+6}, v{t+5}, 3, v{t+6}')
    E(f'v_lshl_add_u32 v{t+6}, v{t+2}, 8, v{t+6}')
    E(f'v_lshl_add_u32 v{vWL}, v{t+1}, 11, v{t+6}')
    for j in range(1, 4):
        E(f'v_xor_b32 v{vWL+j}, {64*j}, v{vWL}')
    E(f's_mov_b32 s{sC}, {hex(f32bits(1.4426950408889634 / (128 ** 0.5)))}')
    E(f's_mov_b32 s{sTHR}, 0x53800000')

    def q_reads(n):
        c, s = divmod(n, 4)
        E(f'ds_read_b128 {vr(vXF[n&1],4)}, v{vXA+s}')
        for j in range(4):
            for r in range(2):
                E(f'ds_read_b64_tr_b16 {vr(vWF[n&1]+4*j+2*r,2)}, v{vWA+j} offset:{4096*s+1024*r}')

    def q_chunk_open(c):
        n_after = 8 if c == 0 else (4 if c < 7 else 0)
        E(f's_waitcnt vmcnt({n_after})')
        BAR()
        if 1 <= c <= 5:
            x_dma(c + 2)
        x_base_sgpr(c, sT0)
        for s in range(4):
            E(f'v_add_u32 v{vXA+s}, s{sT0}, v{vXL+s}')
        for j in range(4):
            E(f'v_add_u32 v{vWA+j}, {xslots(c)[2]*SLOT}, v{vWL+j}')

    C('Q projection')
    q_chunk_open(0)
    q_reads(0)
    for n in range(32):
        E('s_waitcnt lgkmcnt(0)')
        if n + 1 < 32:
            if (n + 1) % 4 == 0:
                q_chunk_open((n + 1) // 4)
            q_reads(n + 1)
        for j in range(4):
            mfma(vO + 16*j, vWF[n&1] + 4*j, vXF[n&1], None if n == 0 else vO + 16*j)

    C('attention addresses')
    E(f'v_and_b32 v{t+2}, 15, {ln}')
    E(f'v_xor_b32 v{t+2}, v{t+2}, v{t+1}')
    E(f'v_lshlrev_b32 v{t+2}, 4, v{t+2}')
    E(f'v_lshl_add_u32 v{t+2}, v{t}, 8, v{t+2}')
    E(f'v_add_u32 v{vKA}, {2*PAIR}, v{t+2}')
    for s in range(1, 8):
        E(f'v_xor_b32 v{vKA+s}, {32*s}, v{vKA}')
    E(f'v_lshl_add_u32 v{t+3}, v{t+1}, 10, v{t+6}')
    E(f'v_add_u32 v{vVA}, {2*PAIR}, v{t+3}')
    for j in range(1, 4):
        E(f'v_xor_b32 v{vVA+j}, {64*j}, v{vVA}')
    E(f's_mov_b32 s{sPAIR}, {2*PAIR}')
    BAR()
    for s in range(8):
        E(f'ds_read_b128 {vr(vF+4*s,4)}, v{vKA+s} offset:{SLOT}')
    C('Q scale + convert')
    E('s_nop 4')
    for j in range(4):
        for hf in range(2):
            sp = 2*j + hf
            for e in range(0, 8, 2):
                a = vO + 16*j + 8*hf + e
                E(f'v_mul_f32 v{a}, s{sC}, v{a}')
                E(f'v_mul_f32 v{a+1}, s{sC}, v{a+1}')
                E(f'v_cvt_pk_bf16_f32 v{vQ+4*sp+e//2}, v{a}, v{a+1}')
    for i in range(64):
        E(f'v_mov_b32 v{vO+i}, 0')
    E(f'v_mov_b32 v{vL}, 0')
    C('QK(0)')
    for s in range(8):
        E(f's_waitcnt lgkmcnt({7-s})')
        mfma(vS[0], vF + 4*s, vQ + 4*s, None if s == 0 else vS[0])

    ops = []
    for u in range(32):
        if u + 1 <= 31:
            for s in range(8):
                ops.append(dict(kind='qk', unit=u+1, s=s, it=u))
        if u >= 1:
            for m in range(2):
                for j in range(4):
                    ops.append(dict(kind='pv', unit=u-1, m=m, j=j, it=u))
    for m in range(2):
        for j in range(4):
            ops.append(dict(kind='pv', unit=31, m=m, j=j, it=32))
    N = len(ops)
    def group_of(op):
        return op['unit'] // 2 - 1 if op['kind'] == 'qk' else op['unit'] // 2
    def nlds(op): return 1 if op['kind'] == 'qk' else 2
    def frag_reads(n):
        op = ops[n]; f = vF + 4*(n % NPOOL)
        if op['kind'] == 'qk':
            E(f'ds_read_b128 {vr(f,4)}, v{vKA+op["s"]} offset:{SLOT + 8192*(op["unit"]%2)}')
        else:
            mp = 2*(op['unit'] % 2) + op['m']
            E(f'ds_read_b64_tr_b16 {vr(f,2)}, v{vVA+op["j"]} offset:{4096*mp}')
            E(f'ds_read_b64_tr_b16 {vr(f+2,2)}, v{vVA+op["j"]} offset:{4096*mp+2048}')
    def group_switch():
        E(f's_add_u32 s{sNXT}, s{sPAIR}, {PAIR}')
        E(f's_cmp_eq_u32 s{sNXT}, {LDS_BYTES}')
        E(f's_cselect_b32 s{sNXT}, 0, s{sNXT}')
        E(f's_sub_u32 s{sDELTA}, s{sNXT}, s{sPAIR}')
        E(f's_mov_b32 s{sPAIR}, s{sNXT}')
        for s in range(8):
            E(f'v_add_u32 v{vKA+s}, s{sDELTA}, v{vKA+s}')
        for j in range(4):
            E(f'v_add_u32 v{vVA+j}, s{sDELTA}, v{vVA+j}')
        BAR()
    def sm_ops(p):
        o = [f'v_mov_b32 v{vLS}, v{vL}']
        for k in range(8):
            t0 = vT + 2*(k % 4)
            o.append(f'v_exp_f32 v{t0}, v{vS[p]+2*k}')
            o.append(f'v_exp_f32 v{t0+1}, v{vS[p]+2*k+1}')
            o.append(f'v_add_f32 v{vL}, v{vL}, v{t0}')
            o.append(f'v_add_f32 v{vL}, v{vL}, v{t0+1}')
            o.append(f'v_cvt_pk_bf16_f32 v{vP[p]+k}, v{t0}, v{t0+1}')
        return o

    for n in range(LA):
        frag_reads(n)
    C('first-unit max')
    E('s_nop 7')
    def maxtree(p, dst, tmp):
        s = vS[p]
        E(f'v_max3_f32 v{dst}, v{s}, v{s+1}, v{s+2}')
        E(f'v_max3_f32 v{tmp}, v{s+3}, v{s+4}, v{s+5}')
        E(f'v_max3_f32 v{dst}, v{dst}, v{s+6}, v{s+7}')
        E(f'v_max3_f32 v{tmp}, v{tmp}, v{s+8}, v{s+9}')
        E(f'v_max3_f32 v{dst}, v{dst}, v{s+10}, v{s+11}')
        E(f'v_max3_f32 v{tmp}, v{tmp}, v{s+12}, v{s+13}')
        E(f'v_max3_f32 v{dst}, v{dst}, v{s+14}, v{s+15}')
        E(f'v_max_f32 v{dst}, v{dst}, v{tmp}')
        E(f'v_mov_b32 v{tmp}, v{dst}')
        E('s_nop 1')
        E(f'v_permlane32_swap_b32 v{dst}, v{tmp}')
        E('s_nop 1')
        E(f'v_max_f32 v{dst}, v{dst}, v{tmp}')
    maxtree(0, vT, vT+1)
    for i in range(16):
        E(f'v_sub_f32 v{vNM+i}, 0, v{vT}')
        E(f'v_sub_f32 v{vS[0]+i}, v{vS[0]+i}, v{vT}')

    it_first = {}
    it_last = {}
    for n, op in enumerate(ops):
        it_first.setdefault(op['it'], n)
        it_last[op['it']] = n

    def emit_slots(n0, n1):
        for n in range(n0, n1):
            op = ops[n]
            u = op['it']
            cnt = sum(nlds(ops[k]) for k in range(n+1, min(n+LA, N)))
            E(f's_waitcnt lgkmcnt({cnt})')
            f = vF + 4*(n % NPOOL)
            if op['kind'] == 'qk':
                p = op['unit'] % 2
                mfma(vS[p], f, vQ + 4*op['s'], vNM if op['s'] == 0 else vS[p])
            else:
                p = op['unit'] % 2
                mfma(vO + 16*op['j'], f, vP[p] + 4*op['m'], vO + 16*op['j'])
            if n + LA < N:
                if group_of(ops[n+LA]) != group_of(ops[n+LA-1]):
                    group_switch()
                frag_reads(n + LA)
            if u <= 31:
                so = sm_ops(u % 2)
                ns = it_last[u] - it_first[u] + 1
                k = n - it_first[u]
                lo = (len(so) * k) // ns
                hi = (len(so) * (k+1)) // ns
                for x in so[lo:hi]:
                    E(x)
                if n == it_last[u]:
                    tag = f'{u}'
                    E(f'v_cmp_nge_f32 vcc, s{sTHR}, v{vL}')
                    E(f's_cbranch_vccnz K1_RARE_{tag}')
                    LB(f'K1_BACK_{tag}')
                    rare_sites.append((tag, u % 2))

    rare_sites = []
    emit_slots(it_first[0], it_last[0] + 1)
    E(f's_mov_b32 s{sCNT}, 14')
    LB('K1_LOOP')
    mark = len(L)
    emit_slots(it_first[1], it_last[2] + 1)
    body0 = L[mark:]
    E(f's_sub_u32 s{sCNT}, s{sCNT}, 1')
    E(f's_cmp_lg_u32 s{sCNT}, 0')
    E('s_cbranch_scc1 K1_LOOP')
    save = list(L); rs = list(rare_sites)
    mark = len(L)
    emit_slots(it_first[3], it_last[4] + 1)
    body1 = [x.replace('_3', '_1').replace('_4', '_2') if 'K1_' in x else x for x in L[mark:]]
    assert body0 == body1, 'loop body not periodic'
    del L[len(save):]; rare_sites[:] = rs
    emit_slots(it_first[29], N)

    C('epilogue')
    stamp()
    E('s_nop 15')
    E(f'v_mov_b32 v{vT}, v{vL}')
    E(f'v_mov_b32 v{vT+1}, v{vL}')
    E('s_nop 1')
    E(f'v_permlane32_swap_b32 v{vT}, v{vT+1}')
    E('s_nop 1')
    E(f'v_add_f32 v{vT}, v{vT}, v{vT+1}')
    E(f'v_rcp_f32 v{vT}, v{vT}')
    E(f's_mul_i32 s{sT0}, s{sB}, 7')
    E(f's_add_u32 s{sT0}, s{sT0}, s{sW}')
    E(f's_lshl_b32 s{sT0}, s{sT0}, 8')
    E(f's_lshl_b32 s{sT1}, s{sH}, 3')
    E(f's_add_u32 s{sT0}, s{sT0}, s{sT1}')
    E(f's_lshl_b32 s{sT0}, s{sT0}, 10')
    E(f's_add_u32 s{sT1}, s{sT0}, 4096')
    E(f'v_lshlrev_b32 v{vT+1}, 4, {ln}')
    for sp in range(8):
        j, hf = divmod(sp, 2)
        d = vF + 4*sp
        for e in range(0, 8, 2):
            a = vO + 16*j + 8*hf + e
            E(f'v_mul_f32 v{a}, v{vT}, v{a}')
            E(f'v_mul_f32 v{a+1}, v{vT}, v{a+1}')
            E(f'v_cvt_pk_bf16_f32 v{d+e//2}, v{a}, v{a+1}')
        E(f'buffer_store_dwordx4 {vr(d,4)}, v{vT+1}, {srd(S_WS)}, s{sT0 if sp < 4 else sT1} offen offset:{1024*(sp%4)} {NT_OST}')
    stamp()
    if PROF:
        E('s_waitcnt vmcnt(0)')
        stamp()
        stamp(True)
    prof_dump(sW, S_WS)
    dbg_end(0, 0)
    E('s_endpgm')

    for tag, p in rare_sites:
        LB(f'K1_RARE_{tag}')
        E('s_nop 15')
        E('s_nop 3')
        maxtree(p, vT, vT+1)
        E(f'v_max_f32 v{vT}, 0, v{vT}')
        E(f'v_exp_f32 v{vT+1}, -v{vT}')
        E('s_nop 0')
        for i in range(64):
            E(f'v_mul_f32 v{vO+i}, v{vT+1}, v{vO+i}')
        E(f'v_mul_f32 v{vL}, v{vT+1}, v{vLS}')
        for i in range(16):
            E(f'v_sub_f32 v{vNM+i}, v{vNM+i}, v{vT}')
            E(f'v_sub_f32 v{vS[0]+i}, v{vS[0]+i}, v{vT}')
            E(f'v_sub_f32 v{vS[1]+i}, v{vS[1]+i}, v{vT}')
        for x in sm_ops(p)[1:]:
            x = x
            E(x)
        E('s_nop 1')
        E(f's_branch K1_BACK_{tag}')

def k1_loader():
    ln = f'v{vLANE}'
    vKo, vVo, vWo = 2, 6, 7
    C('loader wave')
    E(f'v_lshrrev_b32 v10, 4, {ln}')
    E(f'v_and_b32 v11, 15, {ln}')
    E('v_xor_b32 v12, v11, v10')
    E('v_lshlrev_b32 v12, 4, v12')
    E(f'v_lshl_add_u32 v{vKo}, v10, 8, v12')
    for pp in range(1, 4):
        E(f'v_xor_b32 v{vKo+pp}, {64*pp}, v{vKo}')
    E('v_lshlrev_b32 v12, 2, v10')
    E('v_xor_b32 v12, v11, v12')
    E('v_lshlrev_b32 v12, 4, v12')
    E(f'v_lshl_add_u32 v{vVo}, v10, 8, v12')
    E(f'v_lshl_add_u32 v{vWo}, v10, 13, v12')
    E(f's_lshl_b32 s{sT3}, s{sH}, 8')

    def wq_fill(c):
        sl = xslots(c)[2]
        for p in range(16):
            E(f's_mov_b32 m0, {sl*SLOT + p*1024}')
            E(f's_add_u32 s{sT1}, s{sT3}, {(64*c + 4*p) * 8192}')
            E(f'buffer_load_dwordx4 v{vWo}, {srd(S_WQ)}, s{sT1} offen {NT_W} lds')
    def kv_fill(which, tile, ldsbase):
        for g in range(4):
            E(f's_mov_b32 m0, {ldsbase + g*4096}')
            E(f's_mov_b32 s{sT1}, {tile*16384 + g*4096}')
            for pp in range(4):
                vo = vKo + pp if which == 'K' else vVo
                E(f'buffer_load_dwordx4 v{vo}, {srd(S_K if which=="K" else S_V)}, s{sT1} offen offset:{1024*pp} {NT_KV} lds')
    def group_fill(t):
        pair = (3 + t) % 5
        kv_fill('V', t, pair*PAIR)
        if t + 1 <= 15:
            kv_fill('K', t + 1, pair*PAIR + SLOT)

    wq_fill(0); wq_fill(1); wq_fill(2)
    E('s_waitcnt vmcnt(32)'); BAR()
    for c in range(1, 6):
        E('s_waitcnt vmcnt(16)'); BAR()
        wq_fill(c + 2)
    E('s_waitcnt vmcnt(16)'); BAR()
    kv_fill('K', 0, 2*PAIR + SLOT)
    group_fill(0)
    E('s_waitcnt vmcnt(48)'); BAR()
    E(f'v_and_b32 v10, 0x13, {ln}')
    E(f'v_bfe_u32 v11, {ln}, 2, 1')
    E(f'v_bfe_u32 v12, {ln}, 3, 1')
    E('v_lshl_add_u32 v10, v11, 3, v10')
    E('v_lshl_add_u32 v10, v12, 2, v10')
    E('v_lshlrev_b32 v10, 1, v10')
    E(f'v_lshrrev_b32 v11, 5, {ln}')
    E('v_lshl_add_u32 v10, v11, 13, v10')
    E(f'v_add_u32 v11, 4096, v10')
    E(f'v_lshlrev_b32 v12, 4, {ln}')
    E(f's_lshl_b32 s{sT0}, s2, 14')
    E(f's_lshl_b32 s{sT2}, s2, 10')
    E(f's_add_u32 s{sT2}, s{sT2}, {WS_W_OFF}')
    def wo_loads(nb):
        d = 16 + 8*nb
        E(f's_add_u32 s{sT1}, s{sT0}, {nb*64}')
        for e in range(8):
            va = 10 if e < 4 else 11
            E(f'buffer_load_ushort v{d+e}, v{va}, {srd(S_WO)}, s{sT1} offen offset:{1024*(e%4)} {NT_WOL}')
    def wo_store(k):
        dd = 16 + 8*k
        for e in range(0, 8, 2):
            E(f'v_lshl_or_b32 v{160+4*k+e//2}, v{dd+e+1}, 16, v{dd+e}')
        E(f's_add_u32 s{sT1}, s{sT2}, {k*256*1024}')
        E(f'buffer_store_dwordx4 {vr(160+4*k,4)}, v12, {srd(S_WS)}, s{sT1} offen {NT_OST}')
    log = ['K0']*16 + ['g0']*32
    def wait_for(tag):
        last = max(i for i, x in enumerate(log) if x == tag)
        n = len(log) - 1 - last
        E(f's_waitcnt vmcnt({min(n, 63)})')
    wait_for('K0'); BAR()
    group_fill(1); log += ['g1']*32
    for t in range(0, 16):
        wait_for(f'g{t}'); BAR()
        if 2 <= t <= 9:
            wo_store(2*(t-2)); wo_store(2*(t-2)+1); log += ['s']*2
        if t <= 7:
            wo_loads(2*t); wo_loads(2*t+1); log += ['w']*16
        if t + 2 <= 15:
            group_fill(t + 2); log += [f'g{t+2}']*(32 if t + 2 < 15 else 16)

def k2():
    L.append('.globl mha_oproj_kernel')
    L.append('.p2align 8')
    L.append('.type mha_oproj_kernel,@function')
    LB('mha_oproj_kernel')
    S_WS2, S_OUT = 4, 8
    E('s_cmp_ge_u32 s2, 224')
    E('s_cbranch_scc1 K2_END')
    dbg_begin()
    E('s_load_dwordx2 s[12:13], s[0:1], 40')
    E('s_load_dwordx2 s[14:15], s[0:1], 56')
    E('s_and_b32 s16, s2, 7')
    E('s_lshr_b32 s17, s2, 3')
    E('s_mul_i32 s18, s17, 37')
    E('s_lshr_b32 s18, s18, 8')
    E('s_mul_i32 s19, s18, 7')
    E('s_sub_u32 s19, s17, s19')
    E('s_lshr_b32 s20, s16, 1')
    E('s_mul_i32 s20, s20, 7')
    E('s_add_u32 s20, s20, s19')
    E('s_and_b32 s21, s16, 1')
    E('s_lshl_b32 s21, s21, 2')
    E('s_add_u32 s21, s21, s18')
    E('v_lshrrev_b32 v193, 6, v0')
    E('v_and_b32 v194, 63, v0')
    E('s_nop 0')
    E('v_readfirstlane_b32 s22, v193')
    E('v_lshlrev_b32 v195, 4, v194')
    E('s_waitcnt lgkmcnt(0)')
    mk_srd(S_WS2, 14, 15, WS_USED)
    mk_srd(S_OUT, 12, 13, 8*224*512*2)
    if PROF:
        E(f's_mov_b32 s{sPIDX}, 0')
        E(f'v_mov_b32 v{vPROF}, 0')
    stamp(True)
    stamp()
    E('s_lshl_b32 s23, s22, 15')
    E('s_lshl_b32 s24, s20, 19')
    E('s_add_u32 s24, s24, s23')
    E('s_add_u32 s25, s24, 0x40000')
    E('s_lshl_b32 s26, s21, 19')
    E('s_add_u32 s26, s26, s23')
    E(f's_add_u32 s26, s26, {WS_W_OFF}')
    E('s_add_u32 s27, s26, 0x40000')
    ACC = 0
    BUF = 64
    DEPTH = 8
    def loads(ks):
        d = BUF + 16*(ks % DEPTH)
        g, o = divmod(ks, 4)
        if o == 0 and ks > 0:
            for r in range(24, 28):
                E(f's_add_u32 s{r}, s{r}, 4096')
        for st in range(4):
            E(f'buffer_load_dwordx4 {vr(d+4*st,4)}, v195, {srd(S_WS2)}, s{24+st} offen offset:{1024*o} {NT_K2}')
    for ks in range(DEPTH - 1):
        loads(ks)
    for ks in range(32):
        if ks + DEPTH - 1 < 32:
            loads(ks + DEPTH - 1)
        rem = min(32 - 1 - ks, DEPTH - 1)
        E(f's_waitcnt vmcnt({4*rem})')
        d = BUF + 16*(ks % DEPTH)
        for a in range(2):
            for b_ in range(2):
                acc = ACC + 16*(2*a + b_)
                mfma(acc, d + 8 + 4*a, d + 4*b_, None if ks == 0 else acc)
    stamp()
    E('s_nop 15')
    E('s_lshl_b32 s23, s22, 14')
    E('v_add_u32 v196, s23, v195')
    for sl in range(8):
        for q4 in range(2):
            r = ACC + 8*sl + 4*q4
            E(f'ds_write_b128 v196, {vr(r,4)} offset:{sl*2048 + q4*1024}')
    E('s_waitcnt lgkmcnt(0)')
    E('s_barrier')
    E('s_lshl_b32 s23, s22, 11')
    E('v_add_u32 v196, s23, v195')
    E('v_add_u32 v197, 0x10000, v196')
    for p in range(8):
        va = 196 if p < 4 else 197
        for q4 in range(2):
            E(f'ds_read_b128 {vr(64+8*p+4*q4,4)}, v{va} offset:{(p%4)*16384 + q4*1024}')
    E('s_lshr_b32 s24, s22, 2')
    E('s_bfe_u32 s25, s22, 0x10001')
    E('s_and_b32 s26, s22, 1')
    E('s_lshl_b32 s27, s20, 6')
    E('s_lshl_b32 s25, s25, 5')
    E('s_add_u32 s27, s27, s25')
    E('s_lshl_b32 s27, s27, 10')
    E('s_lshl_b32 s28, s21, 7')
    E('s_lshl_b32 s24, s24, 6')
    E('s_lshl_b32 s26, s26, 5')
    E('s_add_u32 s27, s27, s28')
    E('s_add_u32 s27, s27, s24')
    E('s_add_u32 s27, s27, s26')
    E('v_and_b32 v198, 31, v194')
    E('v_lshrrev_b32 v199, 5, v194')
    E('v_lshlrev_b32 v199, 4, v199')
    E('v_lshl_add_u32 v198, v198, 10, v199')
    for p in range(1, 8):
        E(f's_waitcnt lgkmcnt({2*(7-p)})')
        for i in range(8):
            E(f'v_add_f32 v{64+i}, v{64+i}, v{64+8*p+i}')
    for i in range(4):
        E(f'v_cvt_pk_bf16_f32 v{200+i}, v{64+2*i}, v{64+2*i+1}')
    E(f'buffer_store_dwordx4 v[200:203], v198, {srd(S_OUT)}, s27 offen')
    if PROF:
        E('s_waitcnt vmcnt(0)')
        stamp()
        stamp(True)
    prof_dump(22, S_WS2, 1024*1024)
    dbg_end(0, 32)
    LB('K2_END')
    E('s_endpgm')

header()
k1()
k2()
kd('mha_attn_kernel', 240 if PROF else 232, 96 if DBG else 72)
kd('mha_oproj_kernel', 240 if PROF else 204, 96 if DBG else (72 if PROF else 40))
open(OUT, 'w').write('\n'.join(L) + '\n')
print('wrote', OUT, len(L), 'lines')
```

```python
import sys, struct

OUT = sys.argv[1] if len(sys.argv) > 1 else 'standalone__mha_block_cached__near_ridge.s'

import os
PROF = int(os.environ.get('PROF', '0'))
DBG = int(os.environ.get('DBG', '0'))
NT_KV = os.environ.get('NT_KV', 'nt')
NT_X = os.environ.get('NT_X', '')
NT_W = os.environ.get('NT_W', '')
NT_OST = os.environ.get('NT_OST', '').replace('+',' ')
NT_K2 = os.environ.get('NT_K2', '').replace('+',' ')
NT_WOL = os.environ.get('NT_WOL', '').replace('+',' ')
L = []
def E(s): L.append('  ' + s)
def LB(s): L.append(s + ':')
def C(s): L.append('  ; ' + s)

def f32bits(x): return struct.unpack('<I', struct.pack('<f', x))[0]

WS_W_OFF = 16 * 1024 * 1024
WS_USED = WS_W_OFF + 4 * 1024 * 1024
WS_PROF = 32 * 1024 * 1024
if PROF: WS_USED = WS_PROF + 2 * 1024 * 1024
if DBG: WS_USED += 4096
vPROF = 236
sPIDX = 70
def stamp(rt=False):
    if not PROF: return
    E('s_memrealtime s[66:67]' if rt else 's_memtime s[66:67]')
    E('s_waitcnt lgkmcnt(0)')
    E(f's_mov_b32 m0, s{sPIDX}')
    E('s_nop 0')
    E(f'v_writelane_b32 v{vPROF}, s66, m0')
    E(f's_add_u32 s{sPIDX}, s{sPIDX}, 1')
def prof_dump(swave, srdn, extra=0):
    if not PROF: return
    E(f's_lshl_b32 s66, s2, 3')
    E(f's_add_u32 s66, s66, s{swave}')
    E(f's_lshl_b32 s66, s66, 8')
    E(f's_add_u32 s66, s66, {WS_PROF + extra}')
    E(f'v_mbcnt_lo_u32_b32 v{vPROF+1}, -1, 0')
    E(f'v_mbcnt_hi_u32_b32 v{vPROF+1}, -1, v{vPROF+1}')
    E(f'v_lshlrev_b32 v{vPROF+1}, 2, v{vPROF+1}')
    E(f'buffer_store_dword v{vPROF}, v{vPROF+1}, s[{srdn}:{srdn+3}], s66 offen')
def dbg_begin():
    if not DBG: return
    E('s_memrealtime s[80:81]')
    E('s_memtime s[82:83]')
    E('s_load_dwordx2 s[84:85], s[0:1], 48')
    E('s_waitcnt lgkmcnt(0)')
    E('s_mov_b32 s88, s84')
    E('s_and_b32 s89, s85, 0xffff')
    E('s_mov_b32 s90, 256')
    E('s_mov_b32 s91, 0x20000')
def dbg_end(v, base, k2=False, swave=None, wsrd=None):
    if not DBG: return
    lab = f'DBGSKIP{base}'
    E('s_cmp_lg_u32 s2, 0')
    E(f's_cbranch_scc1 {lab}')
    E(f's_cmp_lg_u32 s{swave}, {0 if k2 else (4 if base == 0 else 7)}')
    E(f's_cbranch_scc1 {lab}')
    E('s_waitcnt vmcnt(0)')
    E('s_memrealtime s[84:85]')
    E('s_memtime s[86:87]')
    E('s_waitcnt lgkmcnt(0)')
    E('s_sub_u32 s86, s86, s82')
    E(f'v_mov_b32 v{v}, 0')
    E(f'v_mov_b32 v{v+4}, s80')
    E(f'v_mov_b32 v{v+5}, s84')
    E(f'v_mov_b32 v{v+6}, s86')
    E(f'v_mov_b32 v{v+7}, 0')
    E('s_mov_b64 exec, 1')
    E(f's_mov_b32 s84, {WS_USED - 4096}')
    if not k2:
        E(f'buffer_store_dwordx4 v[{v+4}:{v+7}], v{v}, s[{wsrd}:{wsrd+3}], s84 offen offset:{base}')
    else:
        E(f'buffer_store_dwordx4 v[{v+4}:{v+7}], v{v}, s[88:91], 0 offen offset:{base}')
        E(f'buffer_load_dwordx4 v[{v+8}:{v+11}], v{v}, s[{wsrd}:{wsrd+3}], s84 offen offset:0')
        E(f'buffer_load_dwordx4 v[{v+12}:{v+15}], v{v}, s[{wsrd}:{wsrd+3}], s84 offen offset:16')
        E('s_waitcnt vmcnt(0)')
        E(f'buffer_store_dwordx4 v[{v+8}:{v+11}], v{v}, s[88:91], 0 offen offset:0')
        E(f'buffer_store_dwordx4 v[{v+12}:{v+15}], v{v}, s[88:91], 0 offen offset:16')
    LB(lab)
def BAR():
    stamp()
    E('s_barrier')
    stamp(PROF == 2)

SLOT = 16384
PAIR = 32768
LDS_BYTES = 163840

S_X, S_K, S_V, S_WQ, S_WS, S_WO = 4, 8, 12, 16, 20, 24
sB, sH, sW = 28, 29, 30
sT0, sT1, sT2, sT3 = 48, 49, 50, 51
sXROW, sWGE4, sW4 = 52, 53, 54
sPAIR, sNXT, sDELTA, sCNT, sTHR = 55, 56, 57, 58, 59
sC = 60
sKOFF, sVOFF, sLDS = 61, 62, 63

def srd(n): return f's[{n}:{n+3}]'
def vr(a, n): return f'v[{a}:{a+n-1}]'

vO = 0
vS = [64, 80]
vNM = 96
vQ = 112
vP = [144, 152]
vF = 160
vKA = 192
vVA = 200
vT = 204
vL, vLS = 212, 213
vXO = 214
vXL = 216
vLANE = 220
vWL = 221
vTMP = 225
vXF = [160, 164]
vWF = [64, 80]
vXA = 192
vWA = 200

LA = 6
NPOOL = 8

def header():
    L.append('; Kernarg layout for this problem (64 bytes, ptrs only, base s[0:1]):')
    L.append(f'; @launch kernel=mha_attn_kernel grid=(256,1,1) block=(512,1,1) lds={LDS_BYTES}')
    L.append('; @launch kernel=mha_oproj_kernel grid=(224,1,1) block=(512,1,1) lds=131072')
    L.append('.amdgcn_target "amdgcn-amd-amdhsa--gfx950"')
    L.append('.text')

def kd(name, vgpr, sgpr):
    L.append('.section .rodata,"a"')
    L.append('.p2align 6')
    L.append(f'.amdhsa_kernel {name}')
    L.append(f'  .amdhsa_next_free_vgpr {vgpr}')
    L.append(f'  .amdhsa_next_free_sgpr {sgpr}')
    L.append(f'  .amdhsa_accum_offset {(vgpr+3)//4*4}')
    L.append('  .amdhsa_group_segment_fixed_size 0')
    L.append('  .amdhsa_kernarg_size 64')
    L.append('  .amdhsa_user_sgpr_count 2')
    L.append('  .amdhsa_user_sgpr_kernarg_segment_ptr 1')
    L.append('  .amdhsa_system_sgpr_workgroup_id_x 1')
    L.append('.end_amdhsa_kernel')
    L.append('.text')

def mk_srd(n, lo, hi, size):
    E(f's_mov_b32 s{n}, s{lo}')
    E(f's_and_b32 s{n+1}, s{hi}, 0xffff')
    E(f's_mov_b32 s{n+2}, {size}')
    E(f's_mov_b32 s{n+3}, 0x20000')

def mfma(d, a, b, c):
    cs = '0' if c is None else vr(c, 16)
    E(f'v_mfma_f32_32x32x16_bf16 {vr(d,16)}, {vr(a,4)}, {vr(b,4)}, {cs}')

def k1():
    L.append('.globl mha_attn_kernel')
    L.append('.p2align 8')
    L.append('.type mha_attn_kernel,@function')
    LB('mha_attn_kernel')
    E('s_cmp_ge_u32 s2, 256')
    E('s_cbranch_scc1 K1_END')
    dbg_begin()
    E('s_load_dwordx16 s[32:47], s[0:1], 0')
    E('s_and_b32 s48, s2, 7')
    E('s_lshr_b32 s49, s2, 3')
    E('s_and_b32 s50, s48, 1')
    E('s_lshl_b32 s50, s50, 2')
    E('s_and_b32 s51, s49, 3')
    E(f's_add_u32 s{sB}, s50, s51')
    E('s_lshr_b32 s50, s48, 1')
    E('s_lshl_b32 s50, s50, 3')
    E('s_lshr_b32 s51, s49, 2')
    E(f's_add_u32 s{sH}, s50, s51')
    E(f'v_lshrrev_b32 v1, 6, v0')
    E(f'v_and_b32 v{vLANE}, 63, v0')
    E('s_nop 0')
    E(f'v_readfirstlane_b32 s{sW}, v1')
    E('s_waitcnt lgkmcnt(0)')
    mk_srd(S_X, 32, 33, 8*224*512*2)
    E(f's_lshl_b32 s48, s{sB}, 5')
    E(f's_add_u32 s48, s48, s{sH}')
    E('s_lshl_b32 s49, s48, 18')
    E('s_lshr_b32 s50, s48, 14')
    E('s_add_u32 s34, s34, s49')
    E('s_addc_u32 s35, s35, s50')
    E('s_add_u32 s36, s36, s49')
    E('s_addc_u32 s37, s37, s50')
    mk_srd(S_K, 34, 35, 262144)
    mk_srd(S_V, 36, 37, 262144)
    mk_srd(S_WQ, 38, 39, 512*4096*2)
    mk_srd(S_WO, 40, 41, 4096*512*2)
    mk_srd(S_WS, 46, 47, WS_USED)
    if PROF:
        E(f's_mov_b32 s{sPIDX}, 0')
        E(f'v_mov_b32 v{vPROF}, 0')
    stamp(True)
    stamp()
    E(f's_cmp_eq_u32 s{sW}, 7')
    E('s_cbranch_scc1 K1_LOADER')
    k1_compute()
    LB('K1_LOADER')
    k1_loader()
    if PROF:
        E('s_waitcnt vmcnt(0)')
        stamp()
        stamp(True)
    prof_dump(sW, S_WS)
    dbg_end(0, 16, False, sW, S_WS)
    LB('K1_END')
    E('s_endpgm')

def xslots(c):
    return (3*c) % 10, (3*c+1) % 10, (3*c+2) % 10

def x_base_sgpr(c, dst):
    a, b_, _ = xslots(c)
    E(f's_mul_i32 s{dst}, s{sWGE4}, {(b_-a)*SLOT}')
    E(f's_add_u32 s{dst}, s{dst}, {a*SLOT}')
    E(f's_add_u32 s{dst}, s{dst}, s{sW4}')

def x_dma(c):
    x_base_sgpr(c, sT0)
    for p in range(4):
        E(f's_add_u32 m0, s{sT0}, {p*1024}')
        E(f's_add_u32 s{sT1}, s{sXROW}, {p*8192 + c*128}')
        E(f'buffer_load_dwordx4 v{vXO+(p&1)}, {srd(S_X)}, s{sT1} offen {NT_X} lds')

def k1_compute():
    ln = f'v{vLANE}'
    t = vTMP
    C('lane-derived constants')
    E(f's_cmp_ge_u32 s{sW}, 4')
    E(f's_cselect_b32 s{sWGE4}, 1, 0')
    E(f's_and_b32 s{sW4}, s{sW}, 3')
    E(f's_lshl_b32 s{sW4}, s{sW4}, 12')
    E(f's_mul_i32 s{sXROW}, s{sB}, 224')
    E(f's_lshl_b32 s{sT0}, s{sW}, 5')
    E(f's_add_u32 s{sXROW}, s{sXROW}, s{sT0}')
    E(f's_lshl_b32 s{sXROW}, s{sXROW}, 10')
    E(f'v_lshrrev_b32 v{t}, 3, {ln}')
    E(f'v_lshrrev_b32 v{t+1}, 4, {ln}')
    E(f'v_and_b32 v{t+2}, 7, {ln}')
    E(f'v_xor_b32 v{t+2}, v{t+2}, v{t+1}')
    E(f'v_lshlrev_b32 v{t+2}, 4, v{t+2}')
    E(f'v_lshl_add_u32 v{vXO}, v{t}, 10, v{t+2}')
    E(f'v_xor_b32 v{vXO+1}, 64, v{vXO}')
    for c in range(3):
        x_dma(c)
    E(f'v_and_b32 v{t}, 31, {ln}')
    E(f'v_lshrrev_b32 v{t+1}, 5, {ln}')
    E(f'v_bfe_u32 v{t+2}, {ln}, 1, 3')
    E(f'v_xor_b32 v{t+2}, v{t+2}, v{t+1}')
    E(f'v_lshlrev_b32 v{t+2}, 4, v{t+2}')
    E(f'v_lshl_add_u32 v{vXL}, v{t}, 7, v{t+2}')
    for s in range(1, 4):
        E(f'v_xor_b32 v{vXL+s}, {32*s}, v{vXL}')
    E(f'v_bfe_u32 v{t+2}, {ln}, 2, 2')
    E(f'v_bfe_u32 v{t+3}, {ln}, 4, 1')
    E(f'v_and_b32 v{t+4}, 1, {ln}')
    E(f'v_bfe_u32 v{t+5}, {ln}, 1, 1')
    E(f'v_lshlrev_b32 v{t+6}, 6, v{t+2}')
    E(f'v_lshl_add_u32 v{t+6}, v{t+3}, 5, v{t+6}')
    E(f'v_lshl_add_u32 v{t+6}, v{t+4}, 4, v{t+6}')
    E(f'v_lshl_add_u32 v{t+6}, v{t+5}, 3, v{t+6}')
    E(f'v_lshl_add_u32 v{t+6}, v{t+2}, 8, v{t+6}')
    E(f'v_lshl_add_u32 v{vWL}, v{t+1}, 11, v{t+6}')
    for j in range(1, 4):
        E(f'v_xor_b32 v{vWL+j}, {64*j}, v{vWL}')
    E(f's_mov_b32 s{sC}, {hex(f32bits(1.4426950408889634 / (128 ** 0.5)))}')
    E(f's_mov_b32 s{sTHR}, 0x53800000')

    def q_reads(n):
        c, s = divmod(n, 4)
        E(f'ds_read_b128 {vr(vXF[n&1],4)}, v{vXA+s}')
        for j in range(4):
            for r in range(2):
                E(f'ds_read_b64_tr_b16 {vr(vWF[n&1]+4*j+2*r,2)}, v{vWA+j} offset:{4096*s+1024*r}')

    def q_chunk_open(c):
        n_after = 8 if c == 0 else (4 if c < 7 else 0)
        E(f's_waitcnt vmcnt({n_after})')
        BAR()
        if 1 <= c <= 5:
            x_dma(c + 2)
        x_base_sgpr(c, sT0)
        for s in range(4):
            E(f'v_add_u32 v{vXA+s}, s{sT0}, v{vXL+s}')
        for j in range(4):
            E(f'v_add_u32 v{vWA+j}, {xslots(c)[2]*SLOT}, v{vWL+j}')

    C('Q projection')
    q_chunk_open(0)
    q_reads(0)
    for n in range(32):
        E('s_waitcnt lgkmcnt(0)')
        if n + 1 < 32:
            if (n + 1) % 4 == 0:
                q_chunk_open((n + 1) // 4)
            q_reads(n + 1)
        for j in range(4):
            mfma(vO + 16*j, vWF[n&1] + 4*j, vXF[n&1], None if n == 0 else vO + 16*j)

    C('attention addresses')
    E(f'v_and_b32 v{t+2}, 15, {ln}')
    E(f'v_xor_b32 v{t+2}, v{t+2}, v{t+1}')
    E(f'v_lshlrev_b32 v{t+2}, 4, v{t+2}')
    E(f'v_lshl_add_u32 v{t+2}, v{t}, 8, v{t+2}')
    E(f'v_add_u32 v{vKA}, {2*PAIR}, v{t+2}')
    for s in range(1, 8):
        E(f'v_xor_b32 v{vKA+s}, {32*s}, v{vKA}')
    E(f'v_lshl_add_u32 v{t+3}, v{t+1}, 10, v{t+6}')
    E(f'v_add_u32 v{vVA}, {2*PAIR}, v{t+3}')
    for j in range(1, 4):
        E(f'v_xor_b32 v{vVA+j}, {64*j}, v{vVA}')
    E(f's_mov_b32 s{sPAIR}, {2*PAIR}')
    BAR()
    for s in range(8):
        E(f'ds_read_b128 {vr(vF+4*s,4)}, v{vKA+s} offset:{SLOT}')
    C('Q scale + convert')
    E('s_nop 4')
    for j in range(4):
        for hf in range(2):
            sp = 2*j + hf
            for e in range(0, 8, 2):
                a = vO + 16*j + 8*hf + e
                E(f'v_mul_f32 v{a}, s{sC}, v{a}')
                E(f'v_mul_f32 v{a+1}, s{sC}, v{a+1}')
                E(f'v_cvt_pk_bf16_f32 v{vQ+4*sp+e//2}, v{a}, v{a+1}')
    for i in range(64):
        E(f'v_mov_b32 v{vO+i}, 0')
    E(f'v_mov_b32 v{vL}, 0')
    C('QK(0)')
    for s in range(8):
        E(f's_waitcnt lgkmcnt({7-s})')
        mfma(vS[0], vF + 4*s, vQ + 4*s, None if s == 0 else vS[0])

    ops = []
    for u in range(32):
        if u + 1 <= 31:
            for s in range(8):
                ops.append(dict(kind='qk', unit=u+1, s=s, it=u))
        if u >= 1:
            for m in range(2):
                for j in range(4):
                    ops.append(dict(kind='pv', unit=u-1, m=m, j=j, it=u))
    for m in range(2):
        for j in range(4):
            ops.append(dict(kind='pv', unit=31, m=m, j=j, it=32))
    N = len(ops)
    def group_of(op):
        return op['unit'] // 2 - 1 if op['kind'] == 'qk' else op['unit'] // 2
    def nlds(op): return 1 if op['kind'] == 'qk' else 2
    def frag_reads(n):
        op = ops[n]; f = vF + 4*(n % NPOOL)
        if op['kind'] == 'qk':
            E(f'ds_read_b128 {vr(f,4)}, v{vKA+op["s"]} offset:{SLOT + 8192*(op["unit"]%2)}')
        else:
            mp = 2*(op['unit'] % 2) + op['m']
            E(f'ds_read_b64_tr_b16 {vr(f,2)}, v{vVA+op["j"]} offset:{4096*mp}')
            E(f'ds_read_b64_tr_b16 {vr(f+2,2)}, v{vVA+op["j"]} offset:{4096*mp+2048}')
    def group_switch():
        E(f's_add_u32 s{sNXT}, s{sPAIR}, {PAIR}')
        E(f's_cmp_eq_u32 s{sNXT}, {LDS_BYTES}')
        E(f's_cselect_b32 s{sNXT}, 0, s{sNXT}')
        E(f's_sub_u32 s{sDELTA}, s{sNXT}, s{sPAIR}')
        E(f's_mov_b32 s{sPAIR}, s{sNXT}')
        for s in range(8):
            E(f'v_add_u32 v{vKA+s}, s{sDELTA}, v{vKA+s}')
        for j in range(4):
            E(f'v_add_u32 v{vVA+j}, s{sDELTA}, v{vVA+j}')
        BAR()
    def sm_ops(p):
        o = [f'v_mov_b32 v{vLS}, v{vL}']
        for k in range(8):
            t0 = vT + 2*(k % 4)
            o.append(f'v_exp_f32 v{t0}, v{vS[p]+2*k}')
            o.append(f'v_exp_f32 v{t0+1}, v{vS[p]+2*k+1}')
            o.append(f'v_add_f32 v{vL}, v{vL}, v{t0}')
            o.append(f'v_add_f32 v{vL}, v{vL}, v{t0+1}')
            o.append(f'v_cvt_pk_bf16_f32 v{vP[p]+k}, v{t0}, v{t0+1}')
        return o

    for n in range(LA):
        frag_reads(n)
    C('first-unit max')
    E('s_nop 7')
    def maxtree(p, dst, tmp):
        s = vS[p]
        E(f'v_max3_f32 v{dst}, v{s}, v{s+1}, v{s+2}')
        E(f'v_max3_f32 v{tmp}, v{s+3}, v{s+4}, v{s+5}')
        E(f'v_max3_f32 v{dst}, v{dst}, v{s+6}, v{s+7}')
        E(f'v_max3_f32 v{tmp}, v{tmp}, v{s+8}, v{s+9}')
        E(f'v_max3_f32 v{dst}, v{dst}, v{s+10}, v{s+11}')
        E(f'v_max3_f32 v{tmp}, v{tmp}, v{s+12}, v{s+13}')
        E(f'v_max3_f32 v{dst}, v{dst}, v{s+14}, v{s+15}')
        E(f'v_max_f32 v{dst}, v{dst}, v{tmp}')
        E(f'v_mov_b32 v{tmp}, v{dst}')
        E('s_nop 1')
        E(f'v_permlane32_swap_b32 v{dst}, v{tmp}')
        E('s_nop 1')
        E(f'v_max_f32 v{dst}, v{dst}, v{tmp}')
    maxtree(0, vT, vT+1)
    for i in range(16):
        E(f'v_sub_f32 v{vNM+i}, 0, v{vT}')
        E(f'v_sub_f32 v{vS[0]+i}, v{vS[0]+i}, v{vT}')

    it_first = {}
    it_last = {}
    for n, op in enumerate(ops):
        it_first.setdefault(op['it'], n)
        it_last[op['it']] = n

    def emit_slots(n0, n1):
        for n in range(n0, n1):
            op = ops[n]
            u = op['it']
            cnt = sum(nlds(ops[k]) for k in range(n+1, min(n+LA, N)))
            E(f's_waitcnt lgkmcnt({cnt})')
            f = vF + 4*(n % NPOOL)
            if op['kind'] == 'qk':
                p = op['unit'] % 2
                mfma(vS[p], f, vQ + 4*op['s'], vNM if op['s'] == 0 else vS[p])
            else:
                p = op['unit'] % 2
                mfma(vO + 16*op['j'], f, vP[p] + 4*op['m'], vO + 16*op['j'])
            if n + LA < N:
                if group_of(ops[n+LA]) != group_of(ops[n+LA-1]):
                    group_switch()
                frag_reads(n + LA)
            if u <= 31:
                so = sm_ops(u % 2)
                ns = it_last[u] - it_first[u] + 1
                k = n - it_first[u]
                lo = (len(so) * k) // ns
                hi = (len(so) * (k+1)) // ns
                for x in so[lo:hi]:
                    E(x)
                if n == it_last[u]:
                    tag = f'{u}'
                    E(f'v_cmp_nge_f32 vcc, s{sTHR}, v{vL}')
                    E(f's_cbranch_vccnz K1_RARE_{tag}')
                    LB(f'K1_BACK_{tag}')
                    rare_sites.append((tag, u % 2))

    rare_sites = []
    emit_slots(it_first[0], it_last[0] + 1)
    E(f's_mov_b32 s{sCNT}, 14')
    LB('K1_LOOP')
    mark = len(L)
    emit_slots(it_first[1], it_last[2] + 1)
    body0 = L[mark:]
    E(f's_sub_u32 s{sCNT}, s{sCNT}, 1')
    E(f's_cmp_lg_u32 s{sCNT}, 0')
    E('s_cbranch_scc1 K1_LOOP')
    save = list(L); rs = list(rare_sites)
    mark = len(L)
    emit_slots(it_first[3], it_last[4] + 1)
    body1 = [x.replace('_3', '_1').replace('_4', '_2') if 'K1_' in x else x for x in L[mark:]]
    assert body0 == body1, 'loop body not periodic'
    del L[len(save):]; rare_sites[:] = rs
    emit_slots(it_first[29], N)

    C('epilogue')
    stamp()
    E('s_nop 15')
    E(f'v_mov_b32 v{vT}, v{vL}')
    E(f'v_mov_b32 v{vT+1}, v{vL}')
    E('s_nop 1')
    E(f'v_permlane32_swap_b32 v{vT}, v{vT+1}')
    E('s_nop 1')
    E(f'v_add_f32 v{vT}, v{vT}, v{vT+1}')
    E(f'v_rcp_f32 v{vT}, v{vT}')
    E(f's_mul_i32 s{sT0}, s{sB}, 7')
    E(f's_add_u32 s{sT0}, s{sT0}, s{sW}')
    E(f's_lshl_b32 s{sT0}, s{sT0}, 8')
    E(f's_lshl_b32 s{sT1}, s{sH}, 3')
    E(f's_add_u32 s{sT0}, s{sT0}, s{sT1}')
    E(f's_lshl_b32 s{sT0}, s{sT0}, 10')
    E(f's_add_u32 s{sT1}, s{sT0}, 4096')
    E(f'v_lshlrev_b32 v{vT+1}, 4, {ln}')
    for sp in range(8):
        j, hf = divmod(sp, 2)
        d = vF + 4*sp
        for e in range(0, 8, 2):
            a = vO + 16*j + 8*hf + e
            E(f'v_mul_f32 v{a}, v{vT}, v{a}')
            E(f'v_mul_f32 v{a+1}, v{vT}, v{a+1}')
            E(f'v_cvt_pk_bf16_f32 v{d+e//2}, v{a}, v{a+1}')
        E(f'buffer_store_dwordx4 {vr(d,4)}, v{vT+1}, {srd(S_WS)}, s{sT0 if sp < 4 else sT1} offen offset:{1024*(sp%4)} {NT_OST}')
    stamp()
    if PROF:
        E('s_waitcnt vmcnt(0)')
        stamp()
        stamp(True)
    prof_dump(sW, S_WS)
    dbg_end(0, 0, False, sW, S_WS)
    E('s_endpgm')

    for tag, p in rare_sites:
        LB(f'K1_RARE_{tag}')
        E('s_nop 15')
        E('s_nop 3')
        maxtree(p, vT, vT+1)
        E(f'v_max_f32 v{vT}, 0, v{vT}')
        E(f'v_exp_f32 v{vT+1}, -v{vT}')
        E('s_nop 0')
        for i in range(64):
            E(f'v_mul_f32 v{vO+i}, v{vT+1}, v{vO+i}')
        E(f'v_mul_f32 v{vL}, v{vT+1}, v{vLS}')
        for i in range(16):
            E(f'v_sub_f32 v{vNM+i}, v{vNM+i}, v{vT}')
            E(f'v_sub_f32 v{vS[0]+i}, v{vS[0]+i}, v{vT}')
            E(f'v_sub_f32 v{vS[1]+i}, v{vS[1]+i}, v{vT}')
        for x in sm_ops(p)[1:]:
            x = x
            E(x)
        E('s_nop 1')
        E(f's_branch K1_BACK_{tag}')

def k1_loader():
    ln = f'v{vLANE}'
    vKo, vVo, vWo = 2, 6, 7
    C('loader wave')
    E(f'v_lshrrev_b32 v10, 4, {ln}')
    E(f'v_and_b32 v11, 15, {ln}')
    E('v_xor_b32 v12, v11, v10')
    E('v_lshlrev_b32 v12, 4, v12')
    E(f'v_lshl_add_u32 v{vKo}, v10, 8, v12')
    for pp in range(1, 4):
        E(f'v_xor_b32 v{vKo+pp}, {64*pp}, v{vKo}')
    E('v_lshlrev_b32 v12, 2, v10')
    E('v_xor_b32 v12, v11, v12')
    E('v_lshlrev_b32 v12, 4, v12')
    E(f'v_lshl_add_u32 v{vVo}, v10, 8, v12')
    E(f'v_lshl_add_u32 v{vWo}, v10, 13, v12')
    E(f's_lshl_b32 s{sT3}, s{sH}, 8')

    def wq_fill(c):
        sl = xslots(c)[2]
        for p in range(16):
            E(f's_mov_b32 m0, {sl*SLOT + p*1024}')
            E(f's_add_u32 s{sT1}, s{sT3}, {(64*c + 4*p) * 8192}')
            E(f'buffer_load_dwordx4 v{vWo}, {srd(S_WQ)}, s{sT1} offen {NT_W} lds')
    def kv_fill(which, tile, ldsbase):
        for g in range(4):
            E(f's_mov_b32 m0, {ldsbase + g*4096}')
            E(f's_mov_b32 s{sT1}, {tile*16384 + g*4096}')
            for pp in range(4):
                vo = vKo + pp if which == 'K' else vVo
                E(f'buffer_load_dwordx4 v{vo}, {srd(S_K if which=="K" else S_V)}, s{sT1} offen offset:{1024*pp} {NT_KV} lds')
    def group_fill(t):
        pair = (3 + t) % 5
        kv_fill('V', t, pair*PAIR)
        if t + 1 <= 15:
            kv_fill('K', t + 1, pair*PAIR + SLOT)

    wq_fill(0); wq_fill(1); wq_fill(2)
    E('s_waitcnt vmcnt(32)'); BAR()
    for c in range(1, 6):
        E('s_waitcnt vmcnt(16)'); BAR()
        wq_fill(c + 2)
    E('s_waitcnt vmcnt(16)'); BAR()
    kv_fill('K', 0, 2*PAIR + SLOT)
    group_fill(0)
    E('s_waitcnt vmcnt(48)'); BAR()
    E(f'v_and_b32 v10, 0x13, {ln}')
    E(f'v_bfe_u32 v11, {ln}, 2, 1')
    E(f'v_bfe_u32 v12, {ln}, 3, 1')
    E('v_lshl_add_u32 v10, v11, 3, v10')
    E('v_lshl_add_u32 v10, v12, 2, v10')
    E('v_lshlrev_b32 v10, 1, v10')
    E(f'v_lshrrev_b32 v11, 5, {ln}')
    E('v_lshl_add_u32 v10, v11, 13, v10')
    E(f'v_add_u32 v11, 4096, v10')
    E(f'v_lshlrev_b32 v12, 4, {ln}')
    E(f's_lshl_b32 s{sT0}, s2, 14')
    E(f's_lshl_b32 s{sT2}, s2, 10')
    E(f's_add_u32 s{sT2}, s{sT2}, {WS_W_OFF}')
    def wo_loads(nb):
        d = 16 + 8*nb
        E(f's_add_u32 s{sT1}, s{sT0}, {nb*64}')
        for e in range(8):
            va = 10 if e < 4 else 11
            E(f'buffer_load_ushort v{d+e}, v{va}, {srd(S_WO)}, s{sT1} offen offset:{1024*(e%4)} {NT_WOL}')
    def wo_store(k):
        dd = 16 + 8*k
        for e in range(0, 8, 2):
            E(f'v_lshl_or_b32 v{160+4*k+e//2}, v{dd+e+1}, 16, v{dd+e}')
        E(f's_add_u32 s{sT1}, s{sT2}, {k*256*1024}')
        E(f'buffer_store_dwordx4 {vr(160+4*k,4)}, v12, {srd(S_WS)}, s{sT1} offen {NT_OST}')
    log = ['K0']*16 + ['g0']*32
    def wait_for(tag):
        last = max(i for i, x in enumerate(log) if x == tag)
        n = len(log) - 1 - last
        E(f's_waitcnt vmcnt({min(n, 63)})')
    wait_for('K0'); BAR()
    group_fill(1); log += ['g1']*32
    for t in range(0, 16):
        wait_for(f'g{t}'); BAR()
        if 2 <= t <= 9:
            wo_store(2*(t-2)); wo_store(2*(t-2)+1); log += ['s']*2
        if t <= 7:
            wo_loads(2*t); wo_loads(2*t+1); log += ['w']*16
        if t + 2 <= 15:
            group_fill(t + 2); log += [f'g{t+2}']*(32 if t + 2 < 15 else 16)

def k2():
    L.append('.globl mha_oproj_kernel')
    L.append('.p2align 8')
    L.append('.type mha_oproj_kernel,@function')
    LB('mha_oproj_kernel')
    S_WS2, S_OUT = 4, 8
    E('s_cmp_ge_u32 s2, 224')
    E('s_cbranch_scc1 K2_END')
    dbg_begin()
    E('s_load_dwordx2 s[12:13], s[0:1], 40')
    E('s_load_dwordx2 s[14:15], s[0:1], 56')
    E('s_and_b32 s16, s2, 7')
    E('s_lshr_b32 s17, s2, 3')
    E('s_mul_i32 s18, s17, 37')
    E('s_lshr_b32 s18, s18, 8')
    E('s_mul_i32 s19, s18, 7')
    E('s_sub_u32 s19, s17, s19')
    E('s_lshr_b32 s20, s16, 1')
    E('s_mul_i32 s20, s20, 7')
    E('s_add_u32 s20, s20, s19')
    E('s_and_b32 s21, s16, 1')
    E('s_lshl_b32 s21, s21, 2')
    E('s_add_u32 s21, s21, s18')
    E('v_lshrrev_b32 v193, 6, v0')
    E('v_and_b32 v194, 63, v0')
    E('s_nop 0')
    E('v_readfirstlane_b32 s22, v193')
    E('v_lshlrev_b32 v195, 4, v194')
    E('s_waitcnt lgkmcnt(0)')
    mk_srd(S_WS2, 14, 15, WS_USED)
    mk_srd(S_OUT, 12, 13, 8*224*512*2)
    if PROF:
        E(f's_mov_b32 s{sPIDX}, 0')
        E(f'v_mov_b32 v{vPROF}, 0')
    stamp(True)
    stamp()
    E('s_lshl_b32 s23, s22, 15')
    E('s_lshl_b32 s24, s20, 19')
    E('s_add_u32 s24, s24, s23')
    E('s_add_u32 s25, s24, 0x40000')
    E('s_lshl_b32 s26, s21, 19')
    E('s_add_u32 s26, s26, s23')
    E(f's_add_u32 s26, s26, {WS_W_OFF}')
    E('s_add_u32 s27, s26, 0x40000')
    ACC = 0
    BUF = 64
    DEPTH = 8
    def loads(ks):
        d = BUF + 16*(ks % DEPTH)
        g, o = divmod(ks, 4)
        if o == 0 and ks > 0:
            for r in range(24, 28):
                E(f's_add_u32 s{r}, s{r}, 4096')
        for st in range(4):
            E(f'buffer_load_dwordx4 {vr(d+4*st,4)}, v195, {srd(S_WS2)}, s{24+st} offen offset:{1024*o} {NT_K2}')
    for ks in range(DEPTH - 1):
        loads(ks)
    for ks in range(32):
        if ks + DEPTH - 1 < 32:
            loads(ks + DEPTH - 1)
        rem = min(32 - 1 - ks, DEPTH - 1)
        E(f's_waitcnt vmcnt({4*rem})')
        d = BUF + 16*(ks % DEPTH)
        for a in range(2):
            for b_ in range(2):
                acc = ACC + 16*(2*a + b_)
                mfma(acc, d + 8 + 4*a, d + 4*b_, None if ks == 0 else acc)
    stamp()
    E('s_nop 15')
    E('s_lshl_b32 s23, s22, 14')
    E('v_add_u32 v196, s23, v195')
    for sl in range(8):
        for q4 in range(2):
            r = ACC + 8*sl + 4*q4
            E(f'ds_write_b128 v196, {vr(r,4)} offset:{sl*2048 + q4*1024}')
    E('s_waitcnt lgkmcnt(0)')
    E('s_barrier')
    E('s_lshl_b32 s23, s22, 11')
    E('v_add_u32 v196, s23, v195')
    E('v_add_u32 v197, 0x10000, v196')
    for p in range(8):
        va = 196 if p < 4 else 197
        for q4 in range(2):
            E(f'ds_read_b128 {vr(64+8*p+4*q4,4)}, v{va} offset:{(p%4)*16384 + q4*1024}')
    E('s_lshr_b32 s24, s22, 2')
    E('s_bfe_u32 s25, s22, 0x10001')
    E('s_and_b32 s26, s22, 1')
    E('s_lshl_b32 s27, s20, 6')
    E('s_lshl_b32 s25, s25, 5')
    E('s_add_u32 s27, s27, s25')
    E('s_lshl_b32 s27, s27, 10')
    E('s_lshl_b32 s28, s21, 7')
    E('s_lshl_b32 s24, s24, 6')
    E('s_lshl_b32 s26, s26, 5')
    E('s_add_u32 s27, s27, s28')
    E('s_add_u32 s27, s27, s24')
    E('s_add_u32 s27, s27, s26')
    E('v_and_b32 v198, 31, v194')
    E('v_lshrrev_b32 v199, 5, v194')
    E('v_lshlrev_b32 v199, 4, v199')
    E('v_lshl_add_u32 v198, v198, 10, v199')
    for p in range(1, 8):
        E(f's_waitcnt lgkmcnt({2*(7-p)})')
        for i in range(8):
            E(f'v_add_f32 v{64+i}, v{64+i}, v{64+8*p+i}')
    for i in range(4):
        E(f'v_cvt_pk_bf16_f32 v{200+i}, v{64+2*i}, v{64+2*i+1}')
    E(f'buffer_store_dwordx4 v[200:203], v198, {srd(S_OUT)}, s27 offen')
    if PROF:
        E('s_waitcnt vmcnt(0)')
        stamp()
        stamp(True)
    prof_dump(22, S_WS2, 1024*1024)
    dbg_end(0, 32, True, 22, S_WS2)
    LB('K2_END')
    E('s_endpgm')

header()
k1()
k2()
kd('mha_attn_kernel', 240 if PROF else 232, 96 if DBG else 72)
kd('mha_oproj_kernel', 240 if PROF else 204, 96 if DBG else (72 if PROF else 40))
open(OUT, 'w').write('\n'.join(L) + '\n')
print('wrote', OUT, len(L), 'lines')
```

```python
import sys, struct

OUT = sys.argv[1] if len(sys.argv) > 1 else 'standalone__mha_block_cached__near_ridge.s'

import os
PROF = int(os.environ.get('PROF', '0'))
DBG = int(os.environ.get('DBG', '0'))
PRIO = os.environ.get('PRIO', '')
K2MODE = os.environ.get('K2MODE', 'blk')
K2DEPTH = int(os.environ.get('K2DEPTH', '8'))
NT_KV = os.environ.get('NT_KV', 'nt')
NT_X = os.environ.get('NT_X', '')
NT_W = os.environ.get('NT_W', '')
NT_OST = os.environ.get('NT_OST', 'sc0+sc1').replace('+',' ')
NT_K2 = os.environ.get('NT_K2', '').replace('+',' ')
NT_WOL = os.environ.get('NT_WOL', '').replace('+',' ')
L = []
def E(s): L.append('  ' + s)
def LB(s): L.append(s + ':')
def C(s): L.append('  ; ' + s)

def f32bits(x): return struct.unpack('<I', struct.pack('<f', x))[0]

WS_W_OFF = 16 * 1024 * 1024
WS_USED = WS_W_OFF + 4 * 1024 * 1024
WS_PROF = 32 * 1024 * 1024
if PROF: WS_USED = WS_PROF + 2 * 1024 * 1024
if DBG: WS_USED += 4096
vPROF = 236
sPIDX = 70
def stamp(rt=False):
    if not PROF: return
    E('s_memrealtime s[66:67]' if rt else 's_memtime s[66:67]')
    E('s_waitcnt lgkmcnt(0)')
    E(f's_mov_b32 m0, s{sPIDX}')
    E('s_nop 0')
    E(f'v_writelane_b32 v{vPROF}, s66, m0')
    E(f's_add_u32 s{sPIDX}, s{sPIDX}, 1')
def prof_dump(swave, srdn, extra=0):
    if not PROF: return
    E(f's_lshl_b32 s66, s2, 3')
    E(f's_add_u32 s66, s66, s{swave}')
    E(f's_lshl_b32 s66, s66, 8')
    E(f's_add_u32 s66, s66, {WS_PROF + extra}')
    E(f'v_mbcnt_lo_u32_b32 v{vPROF+1}, -1, 0')
    E(f'v_mbcnt_hi_u32_b32 v{vPROF+1}, -1, v{vPROF+1}')
    E(f'v_lshlrev_b32 v{vPROF+1}, 2, v{vPROF+1}')
    E(f'buffer_store_dword v{vPROF}, v{vPROF+1}, s[{srdn}:{srdn+3}], s66 offen')
def dbg_begin():
    if not DBG: return
    E('s_memrealtime s[80:81]')
    E('s_memtime s[82:83]')
    E('s_load_dwordx2 s[84:85], s[0:1], 48')
    E('s_waitcnt lgkmcnt(0)')
    E('s_mov_b32 s88, s84')
    E('s_and_b32 s89, s85, 0xffff')
    E('s_mov_b32 s90, 256')
    E('s_mov_b32 s91, 0x20000')
def dbg_end(v, base, k2=False, swave=None, wsrd=None):
    if not DBG: return
    lab = f'DBGSKIP{base}'
    E('s_cmp_lg_u32 s2, 0')
    E(f's_cbranch_scc1 {lab}')
    E(f's_cmp_lg_u32 s{swave}, {0 if k2 else (4 if base == 0 else 7)}')
    E(f's_cbranch_scc1 {lab}')
    E('s_waitcnt vmcnt(0)')
    E('s_memrealtime s[84:85]')
    E('s_memtime s[86:87]')
    E('s_waitcnt lgkmcnt(0)')
    E('s_sub_u32 s86, s86, s82')
    E(f'v_mov_b32 v{v}, 0')
    E(f'v_mov_b32 v{v+4}, s80')
    E(f'v_mov_b32 v{v+5}, s84')
    E(f'v_mov_b32 v{v+6}, s86')
    E(f'v_mov_b32 v{v+7}, 0')
    E('s_mov_b64 exec, 1')
    E(f's_mov_b32 s84, {WS_USED - 4096}')
    if not k2:
        E(f'buffer_store_dwordx4 v[{v+4}:{v+7}], v{v}, s[{wsrd}:{wsrd+3}], s84 offen offset:{base}')
    else:
        E(f'buffer_store_dwordx4 v[{v+4}:{v+7}], v{v}, s[88:91], 0 offen offset:{base}')
        E(f'buffer_load_dwordx4 v[{v+8}:{v+11}], v{v}, s[{wsrd}:{wsrd+3}], s84 offen offset:0')
        E(f'buffer_load_dwordx4 v[{v+12}:{v+15}], v{v}, s[{wsrd}:{wsrd+3}], s84 offen offset:16')
        E('s_waitcnt vmcnt(0)')
        E(f'buffer_store_dwordx4 v[{v+8}:{v+11}], v{v}, s[88:91], 0 offen offset:0')
        E(f'buffer_store_dwordx4 v[{v+12}:{v+15}], v{v}, s[88:91], 0 offen offset:16')
    LB(lab)
def BAR():
    stamp()
    E('s_barrier')
    stamp(PROF == 2)

SLOT = 16384
PAIR = 32768
LDS_BYTES = 163840

S_X, S_K, S_V, S_WQ, S_WS, S_WO = 4, 8, 12, 16, 20, 24
sB, sH, sW = 28, 29, 30
sT0, sT1, sT2, sT3 = 48, 49, 50, 51
sXROW, sWGE4, sW4 = 52, 53, 54
sPAIR, sNXT, sDELTA, sCNT, sTHR = 55, 56, 57, 58, 59
sC = 60
sKOFF, sVOFF, sLDS = 61, 62, 63

def srd(n): return f's[{n}:{n+3}]'
def vr(a, n): return f'v[{a}:{a+n-1}]'

vO = 0
vS = [64, 80]
vNM = 96
vQ = 112
vP = [144, 152]
vF = 160
vKA = 192
vVA = 200
vT = 204
vL, vLS = 212, 213
vXO = 214
vXL = 216
vLANE = 220
vWL = 221
vTMP = 225
vXF = [160, 164]
vWF = [64, 80]
vXA = 192
vWA = 200

LA = 6
NPOOL = 8

def header():
    L.append('; Kernarg layout for this problem (64 bytes, ptrs only, base s[0:1]):')
    L.append(f'; @launch kernel=mha_attn_kernel grid=(256,1,1) block=(512,1,1) lds={LDS_BYTES}')
    L.append('; @launch kernel=mha_oproj_kernel grid=(224,1,1) block=(512,1,1) lds=131072')
    L.append('.amdgcn_target "amdgcn-amd-amdhsa--gfx950"')
    L.append('.text')

def kd(name, vgpr, sgpr):
    L.append('.section .rodata,"a"')
    L.append('.p2align 6')
    L.append(f'.amdhsa_kernel {name}')
    L.append(f'  .amdhsa_next_free_vgpr {vgpr}')
    L.append(f'  .amdhsa_next_free_sgpr {sgpr}')
    L.append(f'  .amdhsa_accum_offset {(vgpr+3)//4*4}')
    L.append('  .amdhsa_group_segment_fixed_size 0')
    L.append('  .amdhsa_kernarg_size 64')
    L.append('  .amdhsa_user_sgpr_count 2')
    L.append('  .amdhsa_user_sgpr_kernarg_segment_ptr 1')
    L.append('  .amdhsa_system_sgpr_workgroup_id_x 1')
    L.append('.end_amdhsa_kernel')
    L.append('.text')

def mk_srd(n, lo, hi, size):
    E(f's_mov_b32 s{n}, s{lo}')
    E(f's_and_b32 s{n+1}, s{hi}, 0xffff')
    E(f's_mov_b32 s{n+2}, {size}')
    E(f's_mov_b32 s{n+3}, 0x20000')

def mfma(d, a, b, c):
    cs = '0' if c is None else vr(c, 16)
    E(f'v_mfma_f32_32x32x16_bf16 {vr(d,16)}, {vr(a,4)}, {vr(b,4)}, {cs}')

def k1():
    L.append('.globl mha_attn_kernel')
    L.append('.p2align 8')
    L.append('.type mha_attn_kernel,@function')
    LB('mha_attn_kernel')
    E('s_cmp_ge_u32 s2, 256')
    E('s_cbranch_scc1 K1_END')
    dbg_begin()
    E('s_load_dwordx16 s[32:47], s[0:1], 0')
    E('s_and_b32 s48, s2, 7')
    E('s_lshr_b32 s49, s2, 3')
    E('s_and_b32 s50, s48, 1')
    E('s_lshl_b32 s50, s50, 2')
    E('s_and_b32 s51, s49, 3')
    E(f's_add_u32 s{sB}, s50, s51')
    E('s_lshr_b32 s50, s48, 1')
    E('s_lshl_b32 s50, s50, 3')
    E('s_lshr_b32 s51, s49, 2')
    E(f's_add_u32 s{sH}, s50, s51')
    E(f'v_lshrrev_b32 v1, 6, v0')
    E(f'v_and_b32 v{vLANE}, 63, v0')
    E('s_nop 0')
    E(f'v_readfirstlane_b32 s{sW}, v1')
    E('s_waitcnt lgkmcnt(0)')
    mk_srd(S_X, 32, 33, 8*224*512*2)
    E(f's_lshl_b32 s48, s{sB}, 5')
    E(f's_add_u32 s48, s48, s{sH}')
    E('s_lshl_b32 s49, s48, 18')
    E('s_lshr_b32 s50, s48, 14')
    E('s_add_u32 s34, s34, s49')
    E('s_addc_u32 s35, s35, s50')
    E('s_add_u32 s36, s36, s49')
    E('s_addc_u32 s37, s37, s50')
    mk_srd(S_K, 34, 35, 262144)
    mk_srd(S_V, 36, 37, 262144)
    mk_srd(S_WQ, 38, 39, 512*4096*2)
    mk_srd(S_WO, 40, 41, 4096*512*2)
    mk_srd(S_WS, 46, 47, WS_USED)
    if PROF:
        E(f's_mov_b32 s{sPIDX}, 0')
        E(f'v_mov_b32 v{vPROF}, 0')
    stamp(True)
    stamp()
    E(f's_cmp_eq_u32 s{sW}, 7')
    E('s_cbranch_scc1 K1_LOADER')
    k1_compute()
    LB('K1_LOADER')
    k1_loader()
    if PROF:
        E('s_waitcnt vmcnt(0)')
        stamp()
        stamp(True)
    prof_dump(sW, S_WS)
    dbg_end(0, 16, False, sW, S_WS)
    LB('K1_END')
    E('s_endpgm')

def xslots(c):
    return (3*c) % 10, (3*c+1) % 10, (3*c+2) % 10

def x_base_sgpr(c, dst):
    a, b_, _ = xslots(c)
    E(f's_mul_i32 s{dst}, s{sWGE4}, {(b_-a)*SLOT}')
    E(f's_add_u32 s{dst}, s{dst}, {a*SLOT}')
    E(f's_add_u32 s{dst}, s{dst}, s{sW4}')

def x_dma(c):
    x_base_sgpr(c, sT0)
    for p in range(4):
        E(f's_add_u32 m0, s{sT0}, {p*1024}')
        E(f's_add_u32 s{sT1}, s{sXROW}, {p*8192 + c*128}')
        E(f'buffer_load_dwordx4 v{vXO+(p&1)}, {srd(S_X)}, s{sT1} offen {NT_X} lds')

def k1_compute():
    ln = f'v{vLANE}'
    t = vTMP
    C('lane-derived constants')
    E(f's_cmp_ge_u32 s{sW}, 4')
    E(f's_cselect_b32 s{sWGE4}, 1, 0')
    if 'Y' in PRIO:
        E('s_cbranch_scc0 K1_NOPRIO')
        E('s_setprio 1')
        LB('K1_NOPRIO')
    if 'O' in PRIO:
        E('s_cbranch_scc1 K1_NOPRIO')
        E('s_setprio 1')
        LB('K1_NOPRIO')
    E(f's_and_b32 s{sW4}, s{sW}, 3')
    E(f's_lshl_b32 s{sW4}, s{sW4}, 12')
    E(f's_mul_i32 s{sXROW}, s{sB}, 224')
    E(f's_lshl_b32 s{sT0}, s{sW}, 5')
    E(f's_add_u32 s{sXROW}, s{sXROW}, s{sT0}')
    E(f's_lshl_b32 s{sXROW}, s{sXROW}, 10')
    E(f'v_lshrrev_b32 v{t}, 3, {ln}')
    E(f'v_lshrrev_b32 v{t+1}, 4, {ln}')
    E(f'v_and_b32 v{t+2}, 7, {ln}')
    E(f'v_xor_b32 v{t+2}, v{t+2}, v{t+1}')
    E(f'v_lshlrev_b32 v{t+2}, 4, v{t+2}')
    E(f'v_lshl_add_u32 v{vXO}, v{t}, 10, v{t+2}')
    E(f'v_xor_b32 v{vXO+1}, 64, v{vXO}')
    for c in range(3):
        x_dma(c)
    E(f'v_and_b32 v{t}, 31, {ln}')
    E(f'v_lshrrev_b32 v{t+1}, 5, {ln}')
    E(f'v_bfe_u32 v{t+2}, {ln}, 1, 3')
    E(f'v_xor_b32 v{t+2}, v{t+2}, v{t+1}')
    E(f'v_lshlrev_b32 v{t+2}, 4, v{t+2}')
    E(f'v_lshl_add_u32 v{vXL}, v{t}, 7, v{t+2}')
    for s in range(1, 4):
        E(f'v_xor_b32 v{vXL+s}, {32*s}, v{vXL}')
    E(f'v_bfe_u32 v{t+2}, {ln}, 2, 2')
    E(f'v_bfe_u32 v{t+3}, {ln}, 4, 1')
    E(f'v_and_b32 v{t+4}, 1, {ln}')
    E(f'v_bfe_u32 v{t+5}, {ln}, 1, 1')
    E(f'v_lshlrev_b32 v{t+6}, 6, v{t+2}')
    E(f'v_lshl_add_u32 v{t+6}, v{t+3}, 5, v{t+6}')
    E(f'v_lshl_add_u32 v{t+6}, v{t+4}, 4, v{t+6}')
    E(f'v_lshl_add_u32 v{t+6}, v{t+5}, 3, v{t+6}')
    E(f'v_lshl_add_u32 v{t+6}, v{t+2}, 8, v{t+6}')
    E(f'v_lshl_add_u32 v{vWL}, v{t+1}, 11, v{t+6}')
    for j in range(1, 4):
        E(f'v_xor_b32 v{vWL+j}, {64*j}, v{vWL}')
    E(f's_mov_b32 s{sC}, {hex(f32bits(1.4426950408889634 / (128 ** 0.5)))}')
    E(f's_mov_b32 s{sTHR}, 0x53800000')

    def q_reads(n):
        c, s = divmod(n, 4)
        E(f'ds_read_b128 {vr(vXF[n&1],4)}, v{vXA+s}')
        for j in range(4):
            for r in range(2):
                E(f'ds_read_b64_tr_b16 {vr(vWF[n&1]+4*j+2*r,2)}, v{vWA+j} offset:{4096*s+1024*r}')

    def q_chunk_open(c):
        n_after = 8 if c == 0 else (4 if c < 7 else 0)
        E(f's_waitcnt vmcnt({n_after})')
        BAR()
        if 1 <= c <= 5:
            x_dma(c + 2)
        x_base_sgpr(c, sT0)
        for s in range(4):
            E(f'v_add_u32 v{vXA+s}, s{sT0}, v{vXL+s}')
        for j in range(4):
            E(f'v_add_u32 v{vWA+j}, {xslots(c)[2]*SLOT}, v{vWL+j}')

    C('Q projection')
    q_chunk_open(0)
    q_reads(0)
    for n in range(32):
        E('s_waitcnt lgkmcnt(0)')
        if n + 1 < 32:
            if (n + 1) % 4 == 0:
                q_chunk_open((n + 1) // 4)
            q_reads(n + 1)
        for j in range(4):
            mfma(vO + 16*j, vWF[n&1] + 4*j, vXF[n&1], None if n == 0 else vO + 16*j)

    C('attention addresses')
    E(f'v_and_b32 v{t+2}, 15, {ln}')
    E(f'v_xor_b32 v{t+2}, v{t+2}, v{t+1}')
    E(f'v_lshlrev_b32 v{t+2}, 4, v{t+2}')
    E(f'v_lshl_add_u32 v{t+2}, v{t}, 8, v{t+2}')
    E(f'v_add_u32 v{vKA}, {2*PAIR}, v{t+2}')
    for s in range(1, 8):
        E(f'v_xor_b32 v{vKA+s}, {32*s}, v{vKA}')
    E(f'v_lshl_add_u32 v{t+3}, v{t+1}, 10, v{t+6}')
    E(f'v_add_u32 v{vVA}, {2*PAIR}, v{t+3}')
    for j in range(1, 4):
        E(f'v_xor_b32 v{vVA+j}, {64*j}, v{vVA}')
    E(f's_mov_b32 s{sPAIR}, {2*PAIR}')
    BAR()
    for s in range(8):
        E(f'ds_read_b128 {vr(vF+4*s,4)}, v{vKA+s} offset:{SLOT}')
    C('Q scale + convert')
    E('s_nop 4')
    for j in range(4):
        for hf in range(2):
            sp = 2*j + hf
            for e in range(0, 8, 2):
                a = vO + 16*j + 8*hf + e
                E(f'v_mul_f32 v{a}, s{sC}, v{a}')
                E(f'v_mul_f32 v{a+1}, s{sC}, v{a+1}')
                E(f'v_cvt_pk_bf16_f32 v{vQ+4*sp+e//2}, v{a}, v{a+1}')
    for i in range(64):
        E(f'v_mov_b32 v{vO+i}, 0')
    E(f'v_mov_b32 v{vL}, 0')
    C('QK(0)')
    for s in range(8):
        E(f's_waitcnt lgkmcnt({7-s})')
        mfma(vS[0], vF + 4*s, vQ + 4*s, None if s == 0 else vS[0])

    ops = []
    for u in range(32):
        if u + 1 <= 31:
            for s in range(8):
                ops.append(dict(kind='qk', unit=u+1, s=s, it=u))
        if u >= 1:
            for m in range(2):
                for j in range(4):
                    ops.append(dict(kind='pv', unit=u-1, m=m, j=j, it=u))
    for m in range(2):
        for j in range(4):
            ops.append(dict(kind='pv', unit=31, m=m, j=j, it=32))
    N = len(ops)
    def group_of(op):
        return op['unit'] // 2 - 1 if op['kind'] == 'qk' else op['unit'] // 2
    def nlds(op): return 1 if op['kind'] == 'qk' else 2
    def frag_reads(n):
        op = ops[n]; f = vF + 4*(n % NPOOL)
        if op['kind'] == 'qk':
            E(f'ds_read_b128 {vr(f,4)}, v{vKA+op["s"]} offset:{SLOT + 8192*(op["unit"]%2)}')
        else:
            mp = 2*(op['unit'] % 2) + op['m']
            E(f'ds_read_b64_tr_b16 {vr(f,2)}, v{vVA+op["j"]} offset:{4096*mp}')
            E(f'ds_read_b64_tr_b16 {vr(f+2,2)}, v{vVA+op["j"]} offset:{4096*mp+2048}')
    def group_switch():
        E(f's_add_u32 s{sNXT}, s{sPAIR}, {PAIR}')
        E(f's_cmp_eq_u32 s{sNXT}, {LDS_BYTES}')
        E(f's_cselect_b32 s{sNXT}, 0, s{sNXT}')
        E(f's_sub_u32 s{sDELTA}, s{sNXT}, s{sPAIR}')
        E(f's_mov_b32 s{sPAIR}, s{sNXT}')
        for s in range(8):
            E(f'v_add_u32 v{vKA+s}, s{sDELTA}, v{vKA+s}')
        for j in range(4):
            E(f'v_add_u32 v{vVA+j}, s{sDELTA}, v{vVA+j}')
        BAR()
    def sm_ops(p):
        o = [f'v_mov_b32 v{vLS}, v{vL}']
        for k in range(8):
            t0 = vT + 2*(k % 4)
            o.append(f'v_exp_f32 v{t0}, v{vS[p]+2*k}')
            o.append(f'v_exp_f32 v{t0+1}, v{vS[p]+2*k+1}')
            o.append(f'v_add_f32 v{vL}, v{vL}, v{t0}')
            o.append(f'v_add_f32 v{vL}, v{vL}, v{t0+1}')
            o.append(f'v_cvt_pk_bf16_f32 v{vP[p]+k}, v{t0}, v{t0+1}')
        return o

    for n in range(LA):
        frag_reads(n)
    C('first-unit max')
    E('s_nop 7')
    def maxtree(p, dst, tmp):
        s = vS[p]
        E(f'v_max3_f32 v{dst}, v{s}, v{s+1}, v{s+2}')
        E(f'v_max3_f32 v{tmp}, v{s+3}, v{s+4}, v{s+5}')
        E(f'v_max3_f32 v{dst}, v{dst}, v{s+6}, v{s+7}')
        E(f'v_max3_f32 v{tmp}, v{tmp}, v{s+8}, v{s+9}')
        E(f'v_max3_f32 v{dst}, v{dst}, v{s+10}, v{s+11}')
        E(f'v_max3_f32 v{tmp}, v{tmp}, v{s+12}, v{s+13}')
        E(f'v_max3_f32 v{dst}, v{dst}, v{s+14}, v{s+15}')
        E(f'v_max_f32 v{dst}, v{dst}, v{tmp}')
        E(f'v_mov_b32 v{tmp}, v{dst}')
        E('s_nop 1')
        E(f'v_permlane32_swap_b32 v{dst}, v{tmp}')
        E('s_nop 1')
        E(f'v_max_f32 v{dst}, v{dst}, v{tmp}')
    maxtree(0, vT, vT+1)
    for i in range(16):
        E(f'v_sub_f32 v{vNM+i}, 0, v{vT}')
        E(f'v_sub_f32 v{vS[0]+i}, v{vS[0]+i}, v{vT}')

    it_first = {}
    it_last = {}
    for n, op in enumerate(ops):
        it_first.setdefault(op['it'], n)
        it_last[op['it']] = n

    def emit_slots(n0, n1):
        for n in range(n0, n1):
            op = ops[n]
            u = op['it']
            cnt = sum(nlds(ops[k]) for k in range(n+1, min(n+LA, N)))
            E(f's_waitcnt lgkmcnt({cnt})')
            f = vF + 4*(n % NPOOL)
            if op['kind'] == 'qk':
                p = op['unit'] % 2
                mfma(vS[p], f, vQ + 4*op['s'], vNM if op['s'] == 0 else vS[p])
            else:
                p = op['unit'] % 2
                mfma(vO + 16*op['j'], f, vP[p] + 4*op['m'], vO + 16*op['j'])
            if n + LA < N:
                if group_of(ops[n+LA]) != group_of(ops[n+LA-1]):
                    group_switch()
                frag_reads(n + LA)
            if u <= 31:
                so = sm_ops(u % 2)
                ns = it_last[u] - it_first[u] + 1
                k = n - it_first[u]
                lo = (len(so) * k) // ns
                hi = (len(so) * (k+1)) // ns
                for x in so[lo:hi]:
                    E(x)
                if n == it_last[u]:
                    tag = f'{u}'
                    E(f'v_cmp_nge_f32 vcc, s{sTHR}, v{vL}')
                    E(f's_cbranch_vccnz K1_RARE_{tag}')
                    LB(f'K1_BACK_{tag}')
                    rare_sites.append((tag, u % 2))

    rare_sites = []
    emit_slots(it_first[0], it_last[0] + 1)
    E(f's_mov_b32 s{sCNT}, 14')
    LB('K1_LOOP')
    mark = len(L)
    emit_slots(it_first[1], it_last[2] + 1)
    body0 = L[mark:]
    E(f's_sub_u32 s{sCNT}, s{sCNT}, 1')
    E(f's_cmp_lg_u32 s{sCNT}, 0')
    E('s_cbranch_scc1 K1_LOOP')
    save = list(L); rs = list(rare_sites)
    mark = len(L)
    emit_slots(it_first[3], it_last[4] + 1)
    body1 = [x.replace('_3', '_1').replace('_4', '_2') if 'K1_' in x else x for x in L[mark:]]
    assert body0 == body1, 'loop body not periodic'
    del L[len(save):]; rare_sites[:] = rs
    emit_slots(it_first[29], N)

    C('epilogue')
    stamp()
    E('s_nop 15')
    E(f'v_mov_b32 v{vT}, v{vL}')
    E(f'v_mov_b32 v{vT+1}, v{vL}')
    E('s_nop 1')
    E(f'v_permlane32_swap_b32 v{vT}, v{vT+1}')
    E('s_nop 1')
    E(f'v_add_f32 v{vT}, v{vT}, v{vT+1}')
    E(f'v_rcp_f32 v{vT}, v{vT}')
    E(f's_mul_i32 s{sT0}, s{sB}, 7')
    E(f's_add_u32 s{sT0}, s{sT0}, s{sW}')
    E(f's_lshl_b32 s{sT0}, s{sT0}, 8')
    E(f's_lshl_b32 s{sT1}, s{sH}, 3')
    E(f's_add_u32 s{sT0}, s{sT0}, s{sT1}')
    E(f's_lshl_b32 s{sT0}, s{sT0}, 10')
    E(f's_add_u32 s{sT1}, s{sT0}, 4096')
    E(f'v_lshlrev_b32 v{vT+1}, 4, {ln}')
    for sp in range(8):
        j, hf = divmod(sp, 2)
        d = vF + 4*sp
        for e in range(0, 8, 2):
            a = vO + 16*j + 8*hf + e
            E(f'v_mul_f32 v{a}, v{vT}, v{a}')
            E(f'v_mul_f32 v{a+1}, v{vT}, v{a+1}')
            E(f'v_cvt_pk_bf16_f32 v{d+e//2}, v{a}, v{a+1}')
        E(f'buffer_store_dwordx4 {vr(d,4)}, v{vT+1}, {srd(S_WS)}, s{sT0 if sp < 4 else sT1} offen offset:{1024*(sp%4)} {NT_OST}')
    stamp()
    if PROF:
        E('s_waitcnt vmcnt(0)')
        stamp()
        stamp(True)
    prof_dump(sW, S_WS)
    dbg_end(0, 0, False, sW, S_WS)
    E('s_endpgm')

    for tag, p in rare_sites:
        LB(f'K1_RARE_{tag}')
        E('s_nop 15')
        E('s_nop 3')
        maxtree(p, vT, vT+1)
        E(f'v_max_f32 v{vT}, 0, v{vT}')
        E(f'v_exp_f32 v{vT+1}, -v{vT}')
        E('s_nop 0')
        for i in range(64):
            E(f'v_mul_f32 v{vO+i}, v{vT+1}, v{vO+i}')
        E(f'v_mul_f32 v{vL}, v{vT+1}, v{vLS}')
        for i in range(16):
            E(f'v_sub_f32 v{vNM+i}, v{vNM+i}, v{vT}')
            E(f'v_sub_f32 v{vS[0]+i}, v{vS[0]+i}, v{vT}')
            E(f'v_sub_f32 v{vS[1]+i}, v{vS[1]+i}, v{vT}')
        for x in sm_ops(p)[1:]:
            x = x
            E(x)
        E('s_nop 1')
        E(f's_branch K1_BACK_{tag}')

def k1_loader():
    ln = f'v{vLANE}'
    vKo, vVo, vWo = 2, 6, 7
    C('loader wave')
    if 'L' in PRIO: E('s_setprio 3')
    E(f'v_lshrrev_b32 v10, 4, {ln}')
    E(f'v_and_b32 v11, 15, {ln}')
    E('v_xor_b32 v12, v11, v10')
    E('v_lshlrev_b32 v12, 4, v12')
    E(f'v_lshl_add_u32 v{vKo}, v10, 8, v12')
    for pp in range(1, 4):
        E(f'v_xor_b32 v{vKo+pp}, {64*pp}, v{vKo}')
    E('v_lshlrev_b32 v12, 2, v10')
    E('v_xor_b32 v12, v11, v12')
    E('v_lshlrev_b32 v12, 4, v12')
    E(f'v_lshl_add_u32 v{vVo}, v10, 8, v12')
    E(f'v_lshl_add_u32 v{vWo}, v10, 13, v12')
    E(f's_lshl_b32 s{sT3}, s{sH}, 8')

    def wq_fill(c):
        sl = xslots(c)[2]
        for p in range(16):
            E(f's_mov_b32 m0, {sl*SLOT + p*1024}')
            E(f's_add_u32 s{sT1}, s{sT3}, {(64*c + 4*p) * 8192}')
            E(f'buffer_load_dwordx4 v{vWo}, {srd(S_WQ)}, s{sT1} offen {NT_W} lds')
    def kv_fill(which, tile, ldsbase):
        for g in range(4):
            E(f's_mov_b32 m0, {ldsbase + g*4096}')
            E(f's_mov_b32 s{sT1}, {tile*16384 + g*4096}')
            for pp in range(4):
                vo = vKo + pp if which == 'K' else vVo
                E(f'buffer_load_dwordx4 v{vo}, {srd(S_K if which=="K" else S_V)}, s{sT1} offen offset:{1024*pp} {NT_KV} lds')
    def group_fill(t):
        pair = (3 + t) % 5
        kv_fill('V', t, pair*PAIR)
        if t + 1 <= 15:
            kv_fill('K', t + 1, pair*PAIR + SLOT)

    wq_fill(0); wq_fill(1); wq_fill(2)
    E('s_waitcnt vmcnt(32)'); BAR()
    for c in range(1, 6):
        E('s_waitcnt vmcnt(16)'); BAR()
        wq_fill(c + 2)
    E('s_waitcnt vmcnt(16)'); BAR()
    kv_fill('K', 0, 2*PAIR + SLOT)
    group_fill(0)
    E('s_waitcnt vmcnt(48)'); BAR()
    E(f'v_and_b32 v10, 0x13, {ln}')
    E(f'v_bfe_u32 v11, {ln}, 2, 1')
    E(f'v_bfe_u32 v12, {ln}, 3, 1')
    E('v_lshl_add_u32 v10, v11, 3, v10')
    E('v_lshl_add_u32 v10, v12, 2, v10')
    E('v_lshlrev_b32 v10, 1, v10')
    E(f'v_lshrrev_b32 v11, 5, {ln}')
    E('v_lshl_add_u32 v10, v11, 13, v10')
    E(f'v_add_u32 v11, 4096, v10')
    E(f'v_lshlrev_b32 v12, 4, {ln}')
    E(f's_lshl_b32 s{sT0}, s2, 14')
    E(f's_lshl_b32 s{sT2}, s2, 10')
    E(f's_add_u32 s{sT2}, s{sT2}, {WS_W_OFF}')
    def wo_loads(nb):
        d = 16 + 8*nb
        E(f's_add_u32 s{sT1}, s{sT0}, {nb*64}')
        for e in range(8):
            va = 10 if e < 4 else 11
            E(f'buffer_load_ushort v{d+e}, v{va}, {srd(S_WO)}, s{sT1} offen offset:{1024*(e%4)} {NT_WOL}')
    def wo_store(k):
        dd = 16 + 8*k
        for e in range(0, 8, 2):
            E(f'v_lshl_or_b32 v{160+4*k+e//2}, v{dd+e+1}, 16, v{dd+e}')
        E(f's_add_u32 s{sT1}, s{sT2}, {k*256*1024}')
        E(f'buffer_store_dwordx4 {vr(160+4*k,4)}, v12, {srd(S_WS)}, s{sT1} offen {NT_OST}')
    log = ['K0']*16 + ['g0']*32
    def wait_for(tag):
        last = max(i for i, x in enumerate(log) if x == tag)
        n = len(log) - 1 - last
        E(f's_waitcnt vmcnt({min(n, 63)})')
    wait_for('K0'); BAR()
    group_fill(1); log += ['g1']*32
    for t in range(0, 16):
        wait_for(f'g{t}'); BAR()
        if 2 <= t <= 9:
            wo_store(2*(t-2)); wo_store(2*(t-2)+1); log += ['s']*2
        if t <= 7:
            wo_loads(2*t); wo_loads(2*t+1); log += ['w']*16
        if t + 2 <= 15:
            group_fill(t + 2); log += [f'g{t+2}']*(32 if t + 2 < 15 else 16)

def k2():
    L.append('.globl mha_oproj_kernel')
    L.append('.p2align 8')
    L.append('.type mha_oproj_kernel,@function')
    LB('mha_oproj_kernel')
    S_WS2, S_OUT = 4, 8
    E('s_cmp_ge_u32 s2, 224')
    E('s_cbranch_scc1 K2_END')
    dbg_begin()
    E('s_load_dwordx2 s[12:13], s[0:1], 40')
    E('s_load_dwordx2 s[14:15], s[0:1], 56')
    E('s_and_b32 s16, s2, 7')
    E('s_lshr_b32 s17, s2, 3')
    E('s_mul_i32 s18, s17, 37')
    E('s_lshr_b32 s18, s18, 8')
    E('s_mul_i32 s19, s18, 7')
    E('s_sub_u32 s19, s17, s19')
    E('s_lshr_b32 s20, s16, 1')
    E('s_mul_i32 s20, s20, 7')
    E('s_add_u32 s20, s20, s19')
    E('s_and_b32 s21, s16, 1')
    E('s_lshl_b32 s21, s21, 2')
    E('s_add_u32 s21, s21, s18')
    E('v_lshrrev_b32 v193, 6, v0')
    E('v_and_b32 v194, 63, v0')
    E('s_nop 0')
    E('v_readfirstlane_b32 s22, v193')
    E('v_lshlrev_b32 v195, 4, v194')
    E('s_waitcnt lgkmcnt(0)')
    mk_srd(S_WS2, 14, 15, WS_USED)
    mk_srd(S_OUT, 12, 13, 8*224*512*2)
    if PROF:
        E(f's_mov_b32 s{sPIDX}, 0')
        E(f'v_mov_b32 v{vPROF}, 0')
    stamp(True)
    stamp()
    E(f's_lshl_b32 s23, s22, {10 if K2MODE == "str" else 15}')
    E('s_lshl_b32 s24, s20, 19')
    E('v_add_u32 v204, s24, v195')
    E('v_add_u32 v205, 0x40000, v204')
    E('s_lshl_b32 s26, s21, 19')
    E(f's_add_u32 s26, s26, {WS_W_OFF}')
    E('v_add_u32 v206, s26, v195')
    E('v_add_u32 v207, 0x40000, v206')
    ACC = 0
    BUF = 64
    DEPTH = K2DEPTH
    def loads(ks):
        d = BUF + 16*(ks % DEPTH)
        if ks > 0:
            E(f's_add_u32 s23, s23, {8192 if K2MODE == "str" else 1024}')
        for st in range(4):
            E(f'buffer_load_dwordx4 {vr(d+4*st,4)}, v{204+st}, {srd(S_WS2)}, s23 offen {NT_K2}')
    for ks in range(DEPTH - 1):
        loads(ks)
    for ks in range(32):
        if ks + DEPTH - 1 < 32:
            loads(ks + DEPTH - 1)
        rem = min(32 - 1 - ks, DEPTH - 1)
        E(f's_waitcnt vmcnt({4*rem})')
        d = BUF + 16*(ks % DEPTH)
        for a in range(2):
            for b_ in range(2):
                acc = ACC + 16*(2*a + b_)
                mfma(acc, d + 8 + 4*a, d + 4*b_, None if ks == 0 else acc)
    stamp()
    E('s_nop 15')
    E('s_lshl_b32 s23, s22, 14')
    E('v_add_u32 v196, s23, v195')
    for sl in range(8):
        for q4 in range(2):
            r = ACC + 8*sl + 4*q4
            E(f'ds_write_b128 v196, {vr(r,4)} offset:{sl*2048 + q4*1024}')
    E('s_waitcnt lgkmcnt(0)')
    E('s_barrier')
    E('s_lshl_b32 s23, s22, 11')
    E('v_add_u32 v196, s23, v195')
    E('v_add_u32 v197, 0x10000, v196')
    for p in range(8):
        va = 196 if p < 4 else 197
        for q4 in range(2):
            E(f'ds_read_b128 {vr(64+8*p+4*q4,4)}, v{va} offset:{(p%4)*16384 + q4*1024}')
    E('s_lshr_b32 s24, s22, 2')
    E('s_bfe_u32 s25, s22, 0x10001')
    E('s_and_b32 s26, s22, 1')
    E('s_lshl_b32 s27, s20, 6')
    E('s_lshl_b32 s25, s25, 5')
    E('s_add_u32 s27, s27, s25')
    E('s_lshl_b32 s27, s27, 10')
    E('s_lshl_b32 s28, s21, 7')
    E('s_lshl_b32 s24, s24, 6')
    E('s_lshl_b32 s26, s26, 5')
    E('s_add_u32 s27, s27, s28')
    E('s_add_u32 s27, s27, s24')
    E('s_add_u32 s27, s27, s26')
    E('v_and_b32 v198, 31, v194')
    E('v_lshrrev_b32 v199, 5, v194')
    E('v_lshlrev_b32 v199, 4, v199')
    E('v_lshl_add_u32 v198, v198, 10, v199')
    for p in range(1, 8):
        E(f's_waitcnt lgkmcnt({2*(7-p)})')
        for i in range(8):
            E(f'v_add_f32 v{64+i}, v{64+i}, v{64+8*p+i}')
    for i in range(4):
        E(f'v_cvt_pk_bf16_f32 v{200+i}, v{64+2*i}, v{64+2*i+1}')
    E(f'buffer_store_dwordx4 v[200:203], v198, {srd(S_OUT)}, s27 offen')
    if PROF:
        E('s_waitcnt vmcnt(0)')
        stamp()
        stamp(True)
    prof_dump(22, S_WS2, 1024*1024)
    dbg_end(0, 32, True, 22, S_WS2)
    LB('K2_END')
    E('s_endpgm')

header()
k1()
k2()
kd('mha_attn_kernel', 240 if PROF else 232, 96 if DBG else 72)
kd('mha_oproj_kernel', 240 if PROF else 208, 96 if DBG else (72 if PROF else 40))
open(OUT, 'w').write('\n'.join(L) + '\n')
print('wrote', OUT, len(L), 'lines')
```

```python
import sys, struct

OUT = sys.argv[1] if len(sys.argv) > 1 else 'standalone__mha_block_cached__near_ridge.s'

import os
PROF = int(os.environ.get('PROF', '0'))
DBG = int(os.environ.get('DBG', '0'))
NT0 = int(os.environ.get('NT0', '0'))
PKADD = int(os.environ.get('PKADD', '0'))
PRIO = os.environ.get('PRIO', '')
K2MODE = os.environ.get('K2MODE', 'blk')
K2DEPTH = int(os.environ.get('K2DEPTH', '8'))
NT_KV = os.environ.get('NT_KV', 'nt')
NT_X = os.environ.get('NT_X', '')
NT_W = os.environ.get('NT_W', '')
NT_OST = os.environ.get('NT_OST', 'sc0+sc1').replace('+',' ')
NT_K2 = os.environ.get('NT_K2', '').replace('+',' ')
NT_WOL = os.environ.get('NT_WOL', '').replace('+',' ')
L = []
def E(s): L.append('  ' + s)
def LB(s): L.append(s + ':')
def C(s): L.append('  ; ' + s)

def f32bits(x): return struct.unpack('<I', struct.pack('<f', x))[0]

WS_W_OFF = 16 * 1024 * 1024
WS_USED = WS_W_OFF + 4 * 1024 * 1024
WS_PROF = 32 * 1024 * 1024
if PROF: WS_USED = WS_PROF + 2 * 1024 * 1024
if DBG: WS_USED += 4096
vPROF = 240
sPIDX = 70
def stamp(rt=False):
    if not PROF: return
    E('s_memrealtime s[66:67]' if rt else 's_memtime s[66:67]')
    E('s_waitcnt lgkmcnt(0)')
    E(f's_mov_b32 m0, s{sPIDX}')
    E('s_nop 0')
    E(f'v_writelane_b32 v{vPROF}, s66, m0')
    E(f's_add_u32 s{sPIDX}, s{sPIDX}, 1')
def prof_dump(swave, srdn, extra=0):
    if not PROF: return
    E(f's_lshl_b32 s66, s2, 3')
    E(f's_add_u32 s66, s66, s{swave}')
    E(f's_lshl_b32 s66, s66, 8')
    E(f's_add_u32 s66, s66, {WS_PROF + extra}')
    E(f'v_mbcnt_lo_u32_b32 v{vPROF+1}, -1, 0')
    E(f'v_mbcnt_hi_u32_b32 v{vPROF+1}, -1, v{vPROF+1}')
    E(f'v_lshlrev_b32 v{vPROF+1}, 2, v{vPROF+1}')
    E(f'buffer_store_dword v{vPROF}, v{vPROF+1}, s[{srdn}:{srdn+3}], s66 offen')
def dbg_begin():
    if not DBG: return
    E('s_memrealtime s[80:81]')
    E('s_memtime s[82:83]')
    E('s_load_dwordx2 s[84:85], s[0:1], 48')
    E('s_waitcnt lgkmcnt(0)')
    E('s_mov_b32 s88, s84')
    E('s_and_b32 s89, s85, 0xffff')
    E('s_mov_b32 s90, 256')
    E('s_mov_b32 s91, 0x20000')
def dbg_end(v, base, k2=False, swave=None, wsrd=None):
    if not DBG: return
    lab = f'DBGSKIP{base}'
    E('s_cmp_lg_u32 s2, 0')
    E(f's_cbranch_scc1 {lab}')
    E(f's_cmp_lg_u32 s{swave}, {0 if k2 else (4 if base == 0 else 7)}')
    E(f's_cbranch_scc1 {lab}')
    E('s_waitcnt vmcnt(0)')
    E('s_memrealtime s[84:85]')
    E('s_memtime s[86:87]')
    E('s_waitcnt lgkmcnt(0)')
    E('s_sub_u32 s86, s86, s82')
    E(f'v_mov_b32 v{v}, 0')
    E(f'v_mov_b32 v{v+4}, s80')
    E(f'v_mov_b32 v{v+5}, s84')
    E(f'v_mov_b32 v{v+6}, s86')
    E(f'v_mov_b32 v{v+7}, 0')
    E('s_mov_b64 exec, 1')
    E(f's_mov_b32 s84, {WS_USED - 4096}')
    if not k2:
        E(f'buffer_store_dwordx4 v[{v+4}:{v+7}], v{v}, s[{wsrd}:{wsrd+3}], s84 offen offset:{base}')
    else:
        E(f'buffer_store_dwordx4 v[{v+4}:{v+7}], v{v}, s[88:91], 0 offen offset:{base}')
        E(f'buffer_load_dwordx4 v[{v+8}:{v+11}], v{v}, s[{wsrd}:{wsrd+3}], s84 offen offset:0')
        E(f'buffer_load_dwordx4 v[{v+12}:{v+15}], v{v}, s[{wsrd}:{wsrd+3}], s84 offen offset:16')
        E('s_waitcnt vmcnt(0)')
        E(f'buffer_store_dwordx4 v[{v+8}:{v+11}], v{v}, s[88:91], 0 offen offset:0')
        E(f'buffer_store_dwordx4 v[{v+12}:{v+15}], v{v}, s[88:91], 0 offen offset:16')
    LB(lab)
def BAR():
    stamp()
    E('s_barrier')
    stamp(PROF == 2)

SLOT = 16384
PAIR = 32768
LDS_BYTES = 163840

S_X, S_K, S_V, S_WQ, S_WS, S_WO = 4, 8, 12, 16, 20, 24
sB, sH, sW = 28, 29, 30
sT0, sT1, sT2, sT3 = 48, 49, 50, 51
sXROW, sWGE4, sW4 = 52, 53, 54
sPAIR, sNXT, sDELTA, sCNT, sTHR = 55, 56, 57, 58, 59
sC = 60

def srd(n): return f's[{n}:{n+3}]'
def vr(a, n): return f'v[{a}:{a+n-1}]'

vO = 0
vS = [64, 80]
vNM = 96
vQ = 112
vP = [144, 152]
vF = 160
vKA = 192
vVA = 200
vT = 204
vL, vLS = 232, 234
vQA = 64
vXO = 214
vXL = 216
vLANE = 220
vWL = 221
vTMP = 225
vXF = [144, 148]
vWF = [160, 176]
vXA = 192
vWA = 200

LA = 6
NPOOL = 8

def header():
    L.append('; Kernarg layout for this problem (64 bytes, ptrs only, base s[0:1]):')
    L.append(f'; @launch kernel=mha_attn_kernel grid=(256,1,1) block=(512,1,1) lds={LDS_BYTES}')
    L.append('; @launch kernel=mha_oproj_kernel grid=(224,1,1) block=(512,1,1) lds=131072')
    L.append('.amdgcn_target "amdgcn-amd-amdhsa--gfx950"')
    L.append('.text')

def kd(name, vgpr, sgpr):
    L.append('.section .rodata,"a"')
    L.append('.p2align 6')
    L.append(f'.amdhsa_kernel {name}')
    L.append(f'  .amdhsa_next_free_vgpr {vgpr}')
    L.append(f'  .amdhsa_next_free_sgpr {sgpr}')
    L.append(f'  .amdhsa_accum_offset {(vgpr+3)//4*4}')
    L.append('  .amdhsa_group_segment_fixed_size 0')
    L.append('  .amdhsa_kernarg_size 64')
    L.append('  .amdhsa_user_sgpr_count 2')
    L.append('  .amdhsa_user_sgpr_kernarg_segment_ptr 1')
    L.append('  .amdhsa_system_sgpr_workgroup_id_x 1')
    L.append('.end_amdhsa_kernel')
    L.append('.text')

def mk_srd(n, lo, hi, size):
    E(f's_mov_b32 s{n}, s{lo}')
    E(f's_and_b32 s{n+1}, s{hi}, 0xffff')
    E(f's_mov_b32 s{n+2}, {size}')
    E(f's_mov_b32 s{n+3}, 0x20000')

def mfma(d, a, b, c):
    cs = '0' if c is None else vr(c, 16)
    E(f'v_mfma_f32_32x32x16_bf16 {vr(d,16)}, {vr(a,4)}, {vr(b,4)}, {cs}')

def k1():
    L.append('.globl mha_attn_kernel')
    L.append('.p2align 8')
    L.append('.type mha_attn_kernel,@function')
    LB('mha_attn_kernel')
    E('s_cmp_ge_u32 s2, 256')
    E('s_cbranch_scc1 K1_END')
    dbg_begin()
    E('s_load_dwordx16 s[32:47], s[0:1], 0')
    E('s_and_b32 s48, s2, 7')
    E('s_lshr_b32 s49, s2, 3')
    E('s_and_b32 s50, s48, 1')
    E('s_lshl_b32 s50, s50, 2')
    E('s_and_b32 s51, s49, 3')
    E(f's_add_u32 s{sB}, s50, s51')
    E('s_lshr_b32 s50, s48, 1')
    E('s_lshl_b32 s50, s50, 3')
    E('s_lshr_b32 s51, s49, 2')
    E(f's_add_u32 s{sH}, s50, s51')
    E(f'v_lshrrev_b32 v1, 6, v0')
    E(f'v_and_b32 v{vLANE}, 63, v0')
    E('s_nop 0')
    E(f'v_readfirstlane_b32 s{sW}, v1')
    E('s_waitcnt lgkmcnt(0)')
    mk_srd(S_X, 32, 33, 8*224*512*2)
    E(f's_lshl_b32 s48, s{sB}, 5')
    E(f's_add_u32 s48, s48, s{sH}')
    E('s_lshl_b32 s49, s48, 18')
    E('s_lshr_b32 s50, s48, 14')
    E('s_add_u32 s34, s34, s49')
    E('s_addc_u32 s35, s35, s50')
    E('s_add_u32 s36, s36, s49')
    E('s_addc_u32 s37, s37, s50')
    mk_srd(S_K, 34, 35, 262144)
    mk_srd(S_V, 36, 37, 262144)
    mk_srd(S_WQ, 38, 39, 512*4096*2)
    mk_srd(S_WO, 40, 41, 4096*512*2)
    mk_srd(S_WS, 46, 47, WS_USED)
    if PROF:
        E(f's_mov_b32 s{sPIDX}, 0')
        E(f'v_mov_b32 v{vPROF}, 0')
    stamp(True)
    stamp()
    E(f's_cmp_eq_u32 s{sW}, 7')
    E('s_cbranch_scc1 K1_LOADER')
    k1_compute()
    LB('K1_LOADER')
    k1_loader()
    if PROF:
        E('s_waitcnt vmcnt(0)')
        stamp()
        stamp(True)
    prof_dump(sW, S_WS)
    dbg_end(0, 16, False, sW, S_WS)
    LB('K1_END')
    E('s_endpgm')

def xslots(c):
    return (3*c) % 10, (3*c+1) % 10, (3*c+2) % 10

def x_base_sgpr(c, dst):
    a, b_, _ = xslots(c)
    E(f's_mul_i32 s{dst}, s{sWGE4}, {(b_-a)*SLOT}')
    E(f's_add_u32 s{dst}, s{dst}, {a*SLOT}')
    E(f's_add_u32 s{dst}, s{dst}, s{sW4}')

def x_dma(c):
    x_base_sgpr(c, sT0)
    for p in range(4):
        E(f's_add_u32 m0, s{sT0}, {p*1024}')
        E(f's_add_u32 s{sT1}, s{sXROW}, {p*8192 + c*128}')
        E(f'buffer_load_dwordx4 v{vXO+(p&1)}, {srd(S_X)}, s{sT1} offen {"nt" if c < NT0 else NT_X} lds')

def k1_compute():
    ln = f'v{vLANE}'
    t = vTMP
    C('lane-derived constants')
    E(f's_cmp_ge_u32 s{sW}, 4')
    E(f's_cselect_b32 s{sWGE4}, 1, 0')
    if 'Y' in PRIO:
        E('s_cbranch_scc0 K1_NOPRIO')
        E('s_setprio 1')
        LB('K1_NOPRIO')
    if 'O' in PRIO:
        E('s_cbranch_scc1 K1_NOPRIO')
        E('s_setprio 1')
        LB('K1_NOPRIO')
    E(f's_and_b32 s{sW4}, s{sW}, 3')
    E(f's_lshl_b32 s{sW4}, s{sW4}, 12')
    E(f's_mul_i32 s{sXROW}, s{sB}, 224')
    E(f's_lshl_b32 s{sT0}, s{sW}, 5')
    E(f's_add_u32 s{sXROW}, s{sXROW}, s{sT0}')
    E(f's_lshl_b32 s{sXROW}, s{sXROW}, 10')
    E(f'v_lshrrev_b32 v{t}, 3, {ln}')
    E(f'v_lshrrev_b32 v{t+1}, 4, {ln}')
    E(f'v_and_b32 v{t+2}, 7, {ln}')
    E(f'v_xor_b32 v{t+2}, v{t+2}, v{t+1}')
    E(f'v_lshlrev_b32 v{t+2}, 4, v{t+2}')
    E(f'v_lshl_add_u32 v{vXO}, v{t}, 10, v{t+2}')
    E(f'v_xor_b32 v{vXO+1}, 64, v{vXO}')
    E(f'v_lshrrev_b32 v{t}, 4, {ln}')
    E(f'v_and_b32 v{t+1}, 15, {ln}')
    E(f'v_lshlrev_b32 v{t+2}, 2, v{t}')
    E(f'v_xor_b32 v{t+2}, v{t+1}, v{t+2}')
    E(f'v_lshlrev_b32 v{t+2}, 4, v{t+2}')
    E(f'v_lshl_add_u32 v{t+3}, v{t}, 13, v{t+2}')
    E(f's_lshl_b32 s{sT0}, s{sW}, 11')
    E(f's_lshl_b32 s{sT1}, s{sW}, 16')
    E(f's_lshl_b32 s{sT2}, s{sH}, 8')
    E(f's_add_u32 s{sT1}, s{sT1}, s{sT2}')
    for p in range(2):
        E(f's_add_u32 m0, s{sT0}, {xslots(0)[2]*SLOT + p*1024}')
        E(f's_add_u32 s{sT2}, s{sT1}, {p*32768}')
        E(f'buffer_load_dwordx4 v{t+3}, {srd(S_WQ)}, s{sT2} offen {"nt" if 0 < NT0 else NT_W} lds')
    x_dma(0)
    E(f'v_and_b32 v{t}, 31, {ln}')
    E(f'v_lshrrev_b32 v{t+1}, 5, {ln}')
    E(f'v_bfe_u32 v{t+2}, {ln}, 1, 3')
    E(f'v_xor_b32 v{t+2}, v{t+2}, v{t+1}')
    E(f'v_lshlrev_b32 v{t+2}, 4, v{t+2}')
    E(f'v_lshl_add_u32 v{vXL}, v{t}, 7, v{t+2}')
    for s in range(1, 4):
        E(f'v_xor_b32 v{vXL+s}, {32*s}, v{vXL}')
    E(f'v_bfe_u32 v{t+2}, {ln}, 2, 2')
    E(f'v_bfe_u32 v{t+3}, {ln}, 4, 1')
    E(f'v_and_b32 v{t+4}, 1, {ln}')
    E(f'v_bfe_u32 v{t+5}, {ln}, 1, 1')
    E(f'v_lshlrev_b32 v{t+6}, 6, v{t+2}')
    E(f'v_lshl_add_u32 v{t+6}, v{t+3}, 5, v{t+6}')
    E(f'v_lshl_add_u32 v{t+6}, v{t+4}, 4, v{t+6}')
    E(f'v_lshl_add_u32 v{t+6}, v{t+5}, 3, v{t+6}')
    E(f'v_lshl_add_u32 v{t+6}, v{t+2}, 8, v{t+6}')
    E(f'v_lshl_add_u32 v{vWL}, v{t+1}, 11, v{t+6}')
    for j in range(1, 4):
        E(f'v_xor_b32 v{vWL+j}, {64*j}, v{vWL}')
    E(f's_mov_b32 s{sC}, {hex(f32bits(1.4426950408889634 / (128 ** 0.5)))}')
    E(f's_mov_b32 s{sC+1}, s{sC}')
    E(f's_mov_b32 s{sTHR}, 0x53800000')

    def q_reads(n):
        c, s = divmod(n, 4)
        E(f'ds_read_b128 {vr(vXF[n&1],4)}, v{vXA+s}')
        for j in range(4):
            for r in range(2):
                E(f'ds_read_b64_tr_b16 {vr(vWF[n&1]+4*j+2*r,2)}, v{vWA+j} offset:{4096*s+1024*r}')

    def q_chunk_open(c):
        n_after = 0 if c == 0 else (4 if c < 7 else 0)
        E(f's_waitcnt vmcnt({n_after})')
        if c == 0:
            x_dma(1); x_dma(2)
        BAR()
        if 1 <= c <= 5:
            x_dma(c + 2)
        x_base_sgpr(c, sT0)
        for s in range(4):
            E(f'v_add_u32 v{vXA+s}, s{sT0}, v{vXL+s}')
        for j in range(4):
            E(f'v_add_u32 v{vWA+j}, {xslots(c)[2]*SLOT}, v{vWL+j}')

    C('Q projection')
    q_chunk_open(0)
    q_reads(0)
    for n in range(32):
        E('s_waitcnt lgkmcnt(0)')
        if n + 1 < 32:
            if (n + 1) % 4 == 0:
                q_chunk_open((n + 1) // 4)
            q_reads(n + 1)
        for j in range(4):
            mfma(vQA + 16*j, vWF[n&1] + 4*j, vXF[n&1], None if n == 0 else vQA + 16*j)
            if 4 <= n < 20:
                E(f'v_mov_b32 v{vO + 4*(n-4) + j}, 0')

    C('attention addresses')
    E(f'v_and_b32 v{t+2}, 15, {ln}')
    E(f'v_xor_b32 v{t+2}, v{t+2}, v{t+1}')
    E(f'v_lshlrev_b32 v{t+2}, 4, v{t+2}')
    E(f'v_lshl_add_u32 v{t+2}, v{t}, 8, v{t+2}')
    E(f'v_add_u32 v{vKA}, {2*PAIR}, v{t+2}')
    for s in range(1, 8):
        E(f'v_xor_b32 v{vKA+s}, {32*s}, v{vKA}')
    E(f'v_lshl_add_u32 v{t+3}, v{t+1}, 10, v{t+6}')
    E(f'v_add_u32 v{vVA}, {2*PAIR}, v{t+3}')
    for j in range(1, 4):
        E(f'v_xor_b32 v{vVA+j}, {64*j}, v{vVA}')
    E(f's_mov_b32 s{sPAIR}, {2*PAIR}')
    BAR()
    for s in range(8):
        E(f'ds_read_b128 {vr(vF+4*s,4)}, v{vKA+s} offset:{SLOT}')
    C('Q scale + convert')
    E('s_nop 4')
    for j in (3, 2, 1, 0):
        for hf in range(2):
            sp = 2*j + hf
            for e in range(0, 8, 2):
                a = vQA + 16*j + 8*hf + e
                E(f'v_pk_mul_f32 v[{a}:{a+1}], v[{a}:{a+1}], s[{sC}:{sC+1}]')
            for e in range(0, 8, 2):
                a = vQA + 16*j + 8*hf + e
                E(f'v_cvt_pk_bf16_f32 v{vQ+4*sp+e//2}, v{a}, v{a+1}')
    E(f'v_mov_b32 v{vL}, 0')
    E(f'v_mov_b32 v{vL+1}, 0')
    E('s_nop 0')
    C('QK(0)')
    for s in range(8):
        E(f's_waitcnt lgkmcnt({7-s})')
        mfma(vS[0], vF + 4*s, vQ + 4*s, None if s == 0 else vS[0])

    ops = []
    for u in range(32):
        if u + 1 <= 31:
            for s in range(8):
                ops.append(dict(kind='qk', unit=u+1, s=s, it=u))
        if u >= 1:
            for m in range(2):
                for j in range(4):
                    ops.append(dict(kind='pv', unit=u-1, m=m, j=j, it=u))
    for m in range(2):
        for j in range(4):
            ops.append(dict(kind='pv', unit=31, m=m, j=j, it=32))
    N = len(ops)
    def group_of(op):
        return op['unit'] // 2 - 1 if op['kind'] == 'qk' else op['unit'] // 2
    def nlds(op): return 1 if op['kind'] == 'qk' else 2
    def frag_reads(n):
        op = ops[n]; f = vF + 4*(n % NPOOL)
        if op['kind'] == 'qk':
            E(f'ds_read_b128 {vr(f,4)}, v{vKA+op["s"]} offset:{SLOT + 8192*(op["unit"]%2)}')
        else:
            mp = 2*(op['unit'] % 2) + op['m']
            E(f'ds_read_b64_tr_b16 {vr(f,2)}, v{vVA+op["j"]} offset:{4096*mp}')
            E(f'ds_read_b64_tr_b16 {vr(f+2,2)}, v{vVA+op["j"]} offset:{4096*mp+2048}')
    def group_switch():
        E(f's_add_u32 s{sNXT}, s{sPAIR}, {PAIR}')
        E(f's_cmp_eq_u32 s{sNXT}, {LDS_BYTES}')
        E(f's_cselect_b32 s{sNXT}, 0, s{sNXT}')
        E(f's_sub_u32 s{sDELTA}, s{sNXT}, s{sPAIR}')
        E(f's_mov_b32 s{sPAIR}, s{sNXT}')
        for s in range(8):
            E(f'v_add_u32 v{vKA+s}, s{sDELTA}, v{vKA+s}')
        for j in range(4):
            E(f'v_add_u32 v{vVA+j}, s{sDELTA}, v{vVA+j}')
        BAR()
    def sm_ops(p):
        o = [f'v_mov_b64 v[{vLS}:{vLS+1}], v[{vL}:{vL+1}]']
        def fin(k):
            t0 = vT + 2*(k % 4)
            if PKADD:
                o.append(f'v_pk_add_f32 v[{vL}:{vL+1}], v[{vL}:{vL+1}], v[{t0}:{t0+1}]')
            else:
                o.append(f'v_add_f32 v{vL}, v{vL}, v{t0}')
                o.append(f'v_add_f32 v{vL+1}, v{vL+1}, v{t0+1}')
            o.append(f'v_cvt_pk_bf16_f32 v{vP[p]+k}, v{t0}, v{t0+1}')
        for k in range(8):
            t0 = vT + 2*(k % 4)
            o.append(f'v_exp_f32 v{t0}, v{vS[p]+2*k}')
            o.append(f'v_exp_f32 v{t0+1}, v{vS[p]+2*k+1}')
            if k > 0: fin(k-1)
        fin(7)
        return o

    for n in range(LA):
        frag_reads(n)
    C('first-unit max')
    E('s_nop 7')
    def maxtree(p, dst, tmp):
        s = vS[p]
        E(f'v_max3_f32 v{dst}, v{s}, v{s+1}, v{s+2}')
        E(f'v_max3_f32 v{tmp}, v{s+3}, v{s+4}, v{s+5}')
        E(f'v_max3_f32 v{dst}, v{dst}, v{s+6}, v{s+7}')
        E(f'v_max3_f32 v{tmp}, v{tmp}, v{s+8}, v{s+9}')
        E(f'v_max3_f32 v{dst}, v{dst}, v{s+10}, v{s+11}')
        E(f'v_max3_f32 v{tmp}, v{tmp}, v{s+12}, v{s+13}')
        E(f'v_max3_f32 v{dst}, v{dst}, v{s+14}, v{s+15}')
        E(f'v_max_f32 v{dst}, v{dst}, v{tmp}')
        E(f'v_mov_b32 v{tmp}, v{dst}')
        E('s_nop 1')
        E(f'v_permlane32_swap_b32 v{dst}, v{tmp}')
        E('s_nop 1')
        E(f'v_max_f32 v{dst}, v{dst}, v{tmp}')
    maxtree(0, vT, vT+1)
    for i in range(16):
        E(f'v_sub_f32 v{vNM+i}, 0, v{vT}')
        E(f'v_sub_f32 v{vS[0]+i}, v{vS[0]+i}, v{vT}')

    it_first = {}
    it_last = {}
    for n, op in enumerate(ops):
        it_first.setdefault(op['it'], n)
        it_last[op['it']] = n

    def emit_slots(n0, n1):
        for n in range(n0, n1):
            op = ops[n]
            u = op['it']
            cnt = sum(nlds(ops[k]) for k in range(n+1, min(n+LA, N)))
            E(f's_waitcnt lgkmcnt({cnt})')
            f = vF + 4*(n % NPOOL)
            if op['kind'] == 'qk':
                p = op['unit'] % 2
                mfma(vS[p], f, vQ + 4*op['s'], vNM if op['s'] == 0 else vS[p])
            else:
                p = op['unit'] % 2
                mfma(vO + 16*op['j'], f, vP[p] + 4*op['m'], vO + 16*op['j'])
            if n + LA < N:
                if group_of(ops[n+LA]) != group_of(ops[n+LA-1]):
                    group_switch()
                frag_reads(n + LA)
            if u <= 31:
                so = sm_ops(u % 2)
                ns = it_last[u] - it_first[u] + 1
                k = n - it_first[u]
                lo = (len(so) * k) // ns
                hi = (len(so) * (k+1)) // ns
                for x in so[lo:hi]:
                    E(x)
                if n == it_last[u]:
                    tag = f'{u}'
                    E(f'v_add_f32 v{vT}, v{vL}, v{vL+1}')
                    E(f'v_cmp_nge_f32 vcc, s{sTHR}, v{vT}')
                    E(f's_cbranch_vccnz K1_RARE_{tag}')
                    LB(f'K1_BACK_{tag}')
                    rare_sites.append((tag, u % 2))

    rare_sites = []
    emit_slots(it_first[0], it_last[0] + 1)
    E(f's_mov_b32 s{sCNT}, 14')
    LB('K1_LOOP')
    mark = len(L)
    emit_slots(it_first[1], it_last[2] + 1)
    body0 = L[mark:]
    E(f's_sub_u32 s{sCNT}, s{sCNT}, 1')
    E(f's_cmp_lg_u32 s{sCNT}, 0')
    E('s_cbranch_scc1 K1_LOOP')
    save = list(L); rs = list(rare_sites)
    mark = len(L)
    emit_slots(it_first[3], it_last[4] + 1)
    body1 = [x.replace('_3', '_1').replace('_4', '_2') if 'K1_' in x else x for x in L[mark:]]
    assert body0 == body1, 'loop body not periodic'
    del L[len(save):]; rare_sites[:] = rs
    emit_slots(it_first[29], N)

    C('epilogue')
    stamp()
    E('s_nop 15')
    E(f'v_add_f32 v{vT}, v{vL}, v{vL+1}')
    E(f'v_add_f32 v{vT+1}, v{vL}, v{vL+1}')
    E('s_nop 1')
    E(f'v_permlane32_swap_b32 v{vT}, v{vT+1}')
    E('s_nop 1')
    E(f'v_add_f32 v{vT}, v{vT}, v{vT+1}')
    E(f'v_rcp_f32 v{vT}, v{vT}')
    E(f's_mul_i32 s{sT0}, s{sB}, 7')
    E(f's_add_u32 s{sT0}, s{sT0}, s{sW}')
    E(f's_lshl_b32 s{sT0}, s{sT0}, 8')
    E(f's_lshl_b32 s{sT1}, s{sH}, 3')
    E(f's_add_u32 s{sT0}, s{sT0}, s{sT1}')
    E(f's_lshl_b32 s{sT0}, s{sT0}, 10')
    E(f's_add_u32 s{sT1}, s{sT0}, 4096')
    E(f'v_lshlrev_b32 v{vT+1}, 4, {ln}')
    for sp in range(8):
        j, hf = divmod(sp, 2)
        d = vF + 4*sp
        for e in range(0, 8, 2):
            a = vO + 16*j + 8*hf + e
            E(f'v_mul_f32 v{a}, v{vT}, v{a}')
            E(f'v_mul_f32 v{a+1}, v{vT}, v{a+1}')
            E(f'v_cvt_pk_bf16_f32 v{d+e//2}, v{a}, v{a+1}')
        E(f'buffer_store_dwordx4 {vr(d,4)}, v{vT+1}, {srd(S_WS)}, s{sT0 if sp < 4 else sT1} offen offset:{1024*(sp%4)} {NT_OST}')
    stamp()
    if PROF:
        E('s_waitcnt vmcnt(0)')
        stamp()
        stamp(True)
    prof_dump(sW, S_WS)
    dbg_end(0, 0, False, sW, S_WS)
    E('s_endpgm')

    for tag, p in rare_sites:
        LB(f'K1_RARE_{tag}')
        E('s_nop 15')
        E('s_nop 3')
        maxtree(p, vT, vT+1)
        E(f'v_max_f32 v{vT}, 0, v{vT}')
        E(f'v_exp_f32 v{vT+1}, -v{vT}')
        E('s_nop 0')
        for i in range(64):
            E(f'v_mul_f32 v{vO+i}, v{vT+1}, v{vO+i}')
        E(f'v_mul_f32 v{vL}, v{vT+1}, v{vLS}')
        E(f'v_mul_f32 v{vL+1}, v{vT+1}, v{vLS+1}')
        for i in range(16):
            E(f'v_sub_f32 v{vNM+i}, v{vNM+i}, v{vT}')
            E(f'v_sub_f32 v{vS[0]+i}, v{vS[0]+i}, v{vT}')
            E(f'v_sub_f32 v{vS[1]+i}, v{vS[1]+i}, v{vT}')
        for x in sm_ops(p)[1:]:
            x = x
            E(x)
        E('s_nop 1')
        E(f's_branch K1_BACK_{tag}')

def k1_loader():
    ln = f'v{vLANE}'
    vKo, vVo, vWo = 2, 6, 7
    C('loader wave')
    if 'L' in PRIO: E('s_setprio 3')
    E(f'v_lshrrev_b32 v10, 4, {ln}')
    E(f'v_and_b32 v11, 15, {ln}')
    E('v_xor_b32 v12, v11, v10')
    E('v_lshlrev_b32 v12, 4, v12')
    E(f'v_lshl_add_u32 v{vKo}, v10, 8, v12')
    for pp in range(1, 4):
        E(f'v_xor_b32 v{vKo+pp}, {64*pp}, v{vKo}')
    E('v_lshlrev_b32 v12, 2, v10')
    E('v_xor_b32 v12, v11, v12')
    E('v_lshlrev_b32 v12, 4, v12')
    E(f'v_lshl_add_u32 v{vVo}, v10, 8, v12')
    E(f'v_lshl_add_u32 v{vWo}, v10, 13, v12')
    E(f's_lshl_b32 s{sT3}, s{sH}, 8')

    def wq_fill(c):
        sl = xslots(c)[2]
        for p in range(14 if c == 0 else 0, 16):
            E(f's_mov_b32 m0, {sl*SLOT + p*1024}')
            E(f's_add_u32 s{sT1}, s{sT3}, {(64*c + 4*p) * 8192}')
            E(f'buffer_load_dwordx4 v{vWo}, {srd(S_WQ)}, s{sT1} offen {"nt" if c < NT0 else NT_W} lds')
    def kv_fill(which, tile, ldsbase):
        for g in range(4):
            E(f's_mov_b32 m0, {ldsbase + g*4096}')
            E(f's_mov_b32 s{sT1}, {tile*16384 + g*4096}')
            for pp in range(4):
                vo = vKo + pp if which == 'K' else vVo
                E(f'buffer_load_dwordx4 v{vo}, {srd(S_K if which=="K" else S_V)}, s{sT1} offen offset:{1024*pp} {NT_KV} lds')
    def group_fill(t):
        pair = (3 + t) % 5
        kv_fill('V', t, pair*PAIR)
        if t + 1 <= 15:
            kv_fill('K', t + 1, pair*PAIR + SLOT)

    wq_fill(0)
    wq_fill(1)
    E('s_waitcnt vmcnt(16)')
    BAR()
    wq_fill(2)
    for c in range(1, 6):
        E('s_waitcnt vmcnt(16)'); BAR()
        wq_fill(c + 2)
    E('s_waitcnt vmcnt(16)'); BAR()
    kv_fill('K', 0, 2*PAIR + SLOT)
    E('s_waitcnt vmcnt(16)'); BAR()
    group_fill(0)
    E(f'v_and_b32 v10, 0x13, {ln}')
    E(f'v_bfe_u32 v11, {ln}, 2, 1')
    E(f'v_bfe_u32 v12, {ln}, 3, 1')
    E('v_lshl_add_u32 v10, v11, 3, v10')
    E('v_lshl_add_u32 v10, v12, 2, v10')
    E('v_lshlrev_b32 v10, 1, v10')
    E(f'v_lshrrev_b32 v11, 5, {ln}')
    E('v_lshl_add_u32 v10, v11, 13, v10')
    E(f'v_add_u32 v11, 4096, v10')
    E(f'v_lshlrev_b32 v12, 4, {ln}')
    E(f's_lshl_b32 s{sT0}, s2, 14')
    E(f's_lshl_b32 s{sT2}, s2, 10')
    E(f's_add_u32 s{sT2}, s{sT2}, {WS_W_OFF}')
    def wo_loads(nb):
        d = 16 + 8*nb
        E(f's_add_u32 s{sT1}, s{sT0}, {nb*64}')
        for e in range(8):
            va = 10 if e < 4 else 11
            E(f'buffer_load_ushort v{d+e}, v{va}, {srd(S_WO)}, s{sT1} offen offset:{1024*(e%4)} {NT_WOL}')
    def wo_store(k):
        dd = 16 + 8*k
        for e in range(0, 8, 2):
            E(f'v_lshl_or_b32 v{160+4*k+e//2}, v{dd+e+1}, 16, v{dd+e}')
        E(f's_add_u32 s{sT1}, s{sT2}, {k*256*1024}')
        E(f'buffer_store_dwordx4 {vr(160+4*k,4)}, v12, {srd(S_WS)}, s{sT1} offen {NT_OST}')
    log = ['K0']*16 + ['g0']*32
    def wait_for(tag):
        last = max(i for i, x in enumerate(log) if x == tag)
        n = len(log) - 1 - last
        E(f's_waitcnt vmcnt({min(n, 63)})')
    wait_for('K0'); BAR()
    group_fill(1); log += ['g1']*32
    for t in range(0, 16):
        wait_for(f'g{t}'); BAR()
        if 2 <= t <= 9:
            wo_store(2*(t-2)); wo_store(2*(t-2)+1); log += ['s']*2
        if t <= 7:
            wo_loads(2*t); wo_loads(2*t+1); log += ['w']*16
        if t + 2 <= 15:
            group_fill(t + 2); log += [f'g{t+2}']*(32 if t + 2 < 15 else 16)

def k2():
    L.append('.globl mha_oproj_kernel')
    L.append('.p2align 8')
    L.append('.type mha_oproj_kernel,@function')
    LB('mha_oproj_kernel')
    S_WS2, S_OUT = 4, 8
    E('s_cmp_ge_u32 s2, 224')
    E('s_cbranch_scc1 K2_END')
    dbg_begin()
    E('s_load_dwordx2 s[12:13], s[0:1], 40')
    E('s_load_dwordx2 s[14:15], s[0:1], 56')
    E('s_and_b32 s16, s2, 7')
    E('s_lshr_b32 s17, s2, 3')
    E('s_mul_i32 s18, s17, 37')
    E('s_lshr_b32 s18, s18, 8')
    E('s_mul_i32 s19, s18, 7')
    E('s_sub_u32 s19, s17, s19')
    E('s_lshr_b32 s20, s16, 1')
    E('s_mul_i32 s20, s20, 7')
    E('s_add_u32 s20, s20, s19')
    E('s_and_b32 s21, s16, 1')
    E('s_lshl_b32 s21, s21, 2')
    E('s_add_u32 s21, s21, s18')
    E('v_lshrrev_b32 v193, 6, v0')
    E('v_and_b32 v194, 63, v0')
    E('s_nop 0')
    E('v_readfirstlane_b32 s22, v193')
    E('v_lshlrev_b32 v195, 4, v194')
    E('s_waitcnt lgkmcnt(0)')
    mk_srd(S_WS2, 14, 15, WS_USED)
    mk_srd(S_OUT, 12, 13, 8*224*512*2)
    if PROF:
        E(f's_mov_b32 s{sPIDX}, 0')
        E(f'v_mov_b32 v{vPROF}, 0')
    stamp(True)
    stamp()
    E(f's_lshl_b32 s23, s22, {10 if K2MODE == "str" else 15}')
    E('s_lshl_b32 s24, s20, 19')
    E('v_add_u32 v204, s24, v195')
    E('v_add_u32 v205, 0x40000, v204')
    E('s_lshl_b32 s26, s21, 19')
    E(f's_add_u32 s26, s26, {WS_W_OFF}')
    E('v_add_u32 v206, s26, v195')
    E('v_add_u32 v207, 0x40000, v206')
    ACC = 0
    BUF = 64
    DEPTH = K2DEPTH
    def loads(ks):
        d = BUF + 16*(ks % DEPTH)
        if ks > 0:
            E(f's_add_u32 s23, s23, {8192 if K2MODE == "str" else 1024}')
        for st in range(4):
            E(f'buffer_load_dwordx4 {vr(d+4*st,4)}, v{204+st}, {srd(S_WS2)}, s23 offen {NT_K2}')
    for ks in range(DEPTH - 1):
        loads(ks)
    for ks in range(32):
        if ks + DEPTH - 1 < 32:
            loads(ks + DEPTH - 1)
        rem = min(32 - 1 - ks, DEPTH - 1)
        E(f's_waitcnt vmcnt({4*rem})')
        d = BUF + 16*(ks % DEPTH)
        for a in range(2):
            for b_ in range(2):
                acc = ACC + 16*(2*a + b_)
                mfma(acc, d + 8 + 4*a, d + 4*b_, None if ks == 0 else acc)
    stamp()
    E('s_nop 15')
    E('s_lshl_b32 s23, s22, 14')
    E('v_add_u32 v196, s23, v195')
    for sl in range(8):
        for q4 in range(2):
            r = ACC + 8*sl + 4*q4
            E(f'ds_write_b128 v196, {vr(r,4)} offset:{sl*2048 + q4*1024}')
    E('s_waitcnt lgkmcnt(0)')
    E('s_barrier')
    E('s_lshl_b32 s23, s22, 11')
    E('v_add_u32 v196, s23, v195')
    E('v_add_u32 v197, 0x10000, v196')
    for p in range(8):
        va = 196 if p < 4 else 197
        for q4 in range(2):
            E(f'ds_read_b128 {vr(64+8*p+4*q4,4)}, v{va} offset:{(p%4)*16384 + q4*1024}')
    E('s_lshr_b32 s24, s22, 2')
    E('s_bfe_u32 s25, s22, 0x10001')
    E('s_and_b32 s26, s22, 1')
    E('s_lshl_b32 s27, s20, 6')
    E('s_lshl_b32 s25, s25, 5')
    E('s_add_u32 s27, s27, s25')
    E('s_lshl_b32 s27, s27, 10')
    E('s_lshl_b32 s28, s21, 7')
    E('s_lshl_b32 s24, s24, 6')
    E('s_lshl_b32 s26, s26, 5')
    E('s_add_u32 s27, s27, s28')
    E('s_add_u32 s27, s27, s24')
    E('s_add_u32 s27, s27, s26')
    E('v_and_b32 v198, 31, v194')
    E('v_lshrrev_b32 v199, 5, v194')
    E('v_lshlrev_b32 v199, 4, v199')
    E('v_lshl_add_u32 v198, v198, 10, v199')
    for p in range(1, 8):
        E(f's_waitcnt lgkmcnt({2*(7-p)})')
        for i in range(8):
            E(f'v_add_f32 v{64+i}, v{64+i}, v{64+8*p+i}')
    for i in range(4):
        E(f'v_cvt_pk_bf16_f32 v{200+i}, v{64+2*i}, v{64+2*i+1}')
    E(f'buffer_store_dwordx4 v[200:203], v198, {srd(S_OUT)}, s27 offen')
    if PROF:
        E('s_waitcnt vmcnt(0)')
        stamp()
        stamp(True)
    prof_dump(22, S_WS2, 1024*1024)
    dbg_end(0, 32, True, 22, S_WS2)
    LB('K2_END')
    E('s_endpgm')

header()
k1()
k2()
kd('mha_attn_kernel', 244 if PROF else 236, 96 if DBG else 72)
kd('mha_oproj_kernel', 244 if PROF else 208, 96 if DBG else (72 if PROF else 40))
open(OUT, 'w').write('\n'.join(L) + '\n')
print('wrote', OUT, len(L), 'lines')
```

```python
import sys, struct

OUT = sys.argv[1] if len(sys.argv) > 1 else 'standalone__mha_block_cached__near_ridge.s'

import os
PROF = int(os.environ.get('PROF', '0'))
DBG = int(os.environ.get('DBG', '0'))
NT0 = int(os.environ.get('NT0', '0'))
PKADD = int(os.environ.get('PKADD', '0'))
PRIO = os.environ.get('PRIO', '')
K2MODE = os.environ.get('K2MODE', 'blk')
K2DEPTH = int(os.environ.get('K2DEPTH', '8'))
NT_KV = os.environ.get('NT_KV', 'nt')
NT_X = os.environ.get('NT_X', '')
NT_W = os.environ.get('NT_W', '')
NT_OST = os.environ.get('NT_OST', 'sc0+sc1').replace('+',' ')
NT_K2 = os.environ.get('NT_K2', '').replace('+',' ')
NT_WOL = os.environ.get('NT_WOL', '').replace('+',' ')
L = []
def E(s): L.append('  ' + s)
def LB(s): L.append(s + ':')
def C(s): L.append('  ; ' + s)

def f32bits(x): return struct.unpack('<I', struct.pack('<f', x))[0]

WS_W_OFF = 16 * 1024 * 1024
WS_USED = WS_W_OFF + 4 * 1024 * 1024
WS_PROF = 32 * 1024 * 1024
if PROF: WS_USED = WS_PROF + 2 * 1024 * 1024
if DBG: WS_USED += 4096
vPROF = 240
sPIDX = 70
def stamp(rt=False):
    if not PROF: return
    E('s_memrealtime s[66:67]' if rt else 's_memtime s[66:67]')
    E('s_waitcnt lgkmcnt(0)')
    E(f's_mov_b32 m0, s{sPIDX}')
    E('s_nop 0')
    E(f'v_writelane_b32 v{vPROF}, s66, m0')
    E(f's_add_u32 s{sPIDX}, s{sPIDX}, 1')
def prof_dump(swave, srdn, extra=0):
    if not PROF: return
    E(f's_lshl_b32 s66, s2, 3')
    E(f's_add_u32 s66, s66, s{swave}')
    E(f's_lshl_b32 s66, s66, 8')
    E(f's_add_u32 s66, s66, {WS_PROF + extra}')
    E(f'v_mbcnt_lo_u32_b32 v{vPROF+1}, -1, 0')
    E(f'v_mbcnt_hi_u32_b32 v{vPROF+1}, -1, v{vPROF+1}')
    E(f'v_lshlrev_b32 v{vPROF+1}, 2, v{vPROF+1}')
    E(f'buffer_store_dword v{vPROF}, v{vPROF+1}, s[{srdn}:{srdn+3}], s66 offen')
def dbg_begin():
    if not DBG: return
    E('s_memrealtime s[80:81]')
    E('s_memtime s[82:83]')
    E('s_load_dwordx2 s[84:85], s[0:1], 48')
    E('s_waitcnt lgkmcnt(0)')
    E('s_mov_b32 s88, s84')
    E('s_and_b32 s89, s85, 0xffff')
    E('s_mov_b32 s90, 256')
    E('s_mov_b32 s91, 0x20000')
def dbg_end(v, base, k2=False, swave=None, wsrd=None):
    if not DBG: return
    lab = f'DBGSKIP{base}'
    E('s_cmp_lg_u32 s2, 0')
    E(f's_cbranch_scc1 {lab}')
    E(f's_cmp_lg_u32 s{swave}, {0 if k2 else (4 if base == 0 else 7)}')
    E(f's_cbranch_scc1 {lab}')
    E('s_waitcnt vmcnt(0)')
    E('s_memrealtime s[84:85]')
    E('s_memtime s[86:87]')
    E('s_waitcnt lgkmcnt(0)')
    E('s_sub_u32 s86, s86, s82')
    E(f'v_mov_b32 v{v}, 0')
    E(f'v_mov_b32 v{v+4}, s80')
    E(f'v_mov_b32 v{v+5}, s84')
    E(f'v_mov_b32 v{v+6}, s86')
    E(f'v_mov_b32 v{v+7}, 0')
    E('s_mov_b64 exec, 1')
    E(f's_mov_b32 s84, {WS_USED - 4096}')
    if not k2:
        E(f'buffer_store_dwordx4 v[{v+4}:{v+7}], v{v}, s[{wsrd}:{wsrd+3}], s84 offen offset:{base}')
    else:
        E(f'buffer_store_dwordx4 v[{v+4}:{v+7}], v{v}, s[88:91], 0 offen offset:{base}')
        E(f'buffer_load_dwordx4 v[{v+8}:{v+11}], v{v}, s[{wsrd}:{wsrd+3}], s84 offen offset:0')
        E(f'buffer_load_dwordx4 v[{v+12}:{v+15}], v{v}, s[{wsrd}:{wsrd+3}], s84 offen offset:16')
        E('s_waitcnt vmcnt(0)')
        E(f'buffer_store_dwordx4 v[{v+8}:{v+11}], v{v}, s[88:91], 0 offen offset:0')
        E(f'buffer_store_dwordx4 v[{v+12}:{v+15}], v{v}, s[88:91], 0 offen offset:16')
    LB(lab)
def BAR():
    stamp()
    E('s_barrier')
    stamp(PROF == 2)

SLOT = 16384
PAIR = 32768
LDS_BYTES = 163840

S_X, S_K, S_V, S_WQ, S_WS, S_WO = 4, 8, 12, 16, 20, 24
sB, sH, sW = 28, 29, 30
sT0, sT1, sT2, sT3 = 48, 49, 50, 51
sXROW, sWGE4, sW4 = 52, 53, 54
sPAIR, sNXT, sDELTA, sCNT, sTHR = 55, 56, 57, 58, 59
sC = 60

def srd(n): return f's[{n}:{n+3}]'
def vr(a, n): return f'v[{a}:{a+n-1}]'

vO = 0
vS = [64, 80]
vNM = 96
vQ = 112
vP = [144, 152]
vF = 160
vKA = 192
vVA = 200
vT = 204
vL, vLS = 232, 234
vQA = 64
vXO = 214
vXL = 216
vLANE = 220
vWL = 221
vTMP = 225
vXF = [144, 148]
vWF = [160, 176]
vXA = 192
vWA = 200

LA = 6
NPOOL = 8

def header():
    L.append('; Kernarg layout for this problem (64 bytes, ptrs only, base s[0:1]):')
    L.append(f'; @launch kernel=mha_attn_kernel grid=(256,1,1) block=(512,1,1) lds={LDS_BYTES}')
    L.append('; @launch kernel=mha_oproj_kernel grid=(224,1,1) block=(512,1,1) lds=131072')
    L.append('.amdgcn_target "amdgcn-amd-amdhsa--gfx950"')
    L.append('.text')

def kd(name, vgpr, sgpr):
    L.append('.section .rodata,"a"')
    L.append('.p2align 6')
    L.append(f'.amdhsa_kernel {name}')
    L.append(f'  .amdhsa_next_free_vgpr {vgpr}')
    L.append(f'  .amdhsa_next_free_sgpr {sgpr}')
    L.append(f'  .amdhsa_accum_offset {(vgpr+3)//4*4}')
    L.append('  .amdhsa_group_segment_fixed_size 0')
    L.append('  .amdhsa_kernarg_size 64')
    L.append('  .amdhsa_user_sgpr_count 2')
    L.append('  .amdhsa_user_sgpr_kernarg_segment_ptr 1')
    L.append('  .amdhsa_system_sgpr_workgroup_id_x 1')
    L.append('.end_amdhsa_kernel')
    L.append('.text')

def mk_srd(n, lo, hi, size):
    E(f's_mov_b32 s{n}, s{lo}')
    E(f's_and_b32 s{n+1}, s{hi}, 0xffff')
    E(f's_mov_b32 s{n+2}, {size}')
    E(f's_mov_b32 s{n+3}, 0x20000')

def mfma(d, a, b, c):
    cs = '0' if c is None else vr(c, 16)
    E(f'v_mfma_f32_32x32x16_bf16 {vr(d,16)}, {vr(a,4)}, {vr(b,4)}, {cs}')

def k1():
    L.append('.globl mha_attn_kernel')
    L.append('.p2align 8')
    L.append('.type mha_attn_kernel,@function')
    LB('mha_attn_kernel')
    E('s_cmp_ge_u32 s2, 256')
    E('s_cbranch_scc1 K1_END')
    dbg_begin()
    E('s_load_dwordx16 s[32:47], s[0:1], 0')
    E('s_and_b32 s48, s2, 7')
    E('s_lshr_b32 s49, s2, 3')
    E('s_and_b32 s50, s48, 1')
    E('s_lshl_b32 s50, s50, 2')
    E('s_and_b32 s51, s49, 3')
    E(f's_add_u32 s{sB}, s50, s51')
    E('s_lshr_b32 s50, s48, 1')
    E('s_lshl_b32 s50, s50, 3')
    E('s_lshr_b32 s51, s49, 2')
    E(f's_add_u32 s{sH}, s50, s51')
    E(f'v_lshrrev_b32 v1, 6, v0')
    E(f'v_and_b32 v{vLANE}, 63, v0')
    E('s_nop 0')
    E(f'v_readfirstlane_b32 s{sW}, v1')
    E('s_waitcnt lgkmcnt(0)')
    mk_srd(S_X, 32, 33, 8*224*512*2)
    E(f's_lshl_b32 s48, s{sB}, 5')
    E(f's_add_u32 s48, s48, s{sH}')
    E('s_lshl_b32 s49, s48, 18')
    E('s_lshr_b32 s50, s48, 14')
    E('s_add_u32 s34, s34, s49')
    E('s_addc_u32 s35, s35, s50')
    E('s_add_u32 s36, s36, s49')
    E('s_addc_u32 s37, s37, s50')
    mk_srd(S_K, 34, 35, 262144)
    mk_srd(S_V, 36, 37, 262144)
    mk_srd(S_WQ, 38, 39, 512*4096*2)
    mk_srd(S_WO, 40, 41, 4096*512*2)
    mk_srd(S_WS, 46, 47, WS_USED)
    if PROF:
        E(f's_mov_b32 s{sPIDX}, 0')
        E(f'v_mov_b32 v{vPROF}, 0')
    stamp(True)
    stamp()
    E(f's_cmp_eq_u32 s{sW}, 7')
    E('s_cbranch_scc1 K1_LOADER')
    k1_compute()
    LB('K1_LOADER')
    k1_loader()
    if PROF:
        E('s_waitcnt vmcnt(0)')
        stamp()
        stamp(True)
    prof_dump(sW, S_WS)
    dbg_end(0, 16, False, sW, S_WS)
    LB('K1_END')
    E('s_endpgm')

def xslots(c):
    return (3*c) % 10, (3*c+1) % 10, (3*c+2) % 10

def x_base_sgpr(c, dst):
    a, b_, _ = xslots(c)
    E(f's_mul_i32 s{dst}, s{sWGE4}, {(b_-a)*SLOT}')
    E(f's_add_u32 s{dst}, s{dst}, {a*SLOT}')
    E(f's_add_u32 s{dst}, s{dst}, s{sW4}')

def x_dma(c):
    x_base_sgpr(c, sT0)
    for p in range(4):
        E(f's_add_u32 m0, s{sT0}, {p*1024}')
        E(f's_add_u32 s{sT1}, s{sXROW}, {p*8192 + c*128}')
        E(f'buffer_load_dwordx4 v{vXO+(p&1)}, {srd(S_X)}, s{sT1} offen {"nt" if c < NT0 else NT_X} lds')

def k1_compute():
    ln = f'v{vLANE}'
    t = vTMP
    C('lane-derived constants')
    E(f's_cmp_ge_u32 s{sW}, 4')
    E(f's_cselect_b32 s{sWGE4}, 1, 0')
    if 'Y' in PRIO:
        E('s_cbranch_scc0 K1_NOPRIO')
        E('s_setprio 1')
        LB('K1_NOPRIO')
    if 'O' in PRIO:
        E('s_cbranch_scc1 K1_NOPRIO')
        E('s_setprio 1')
        LB('K1_NOPRIO')
    E(f's_and_b32 s{sW4}, s{sW}, 3')
    E(f's_lshl_b32 s{sW4}, s{sW4}, 12')
    E(f's_mul_i32 s{sXROW}, s{sB}, 224')
    E(f's_lshl_b32 s{sT0}, s{sW}, 5')
    E(f's_add_u32 s{sXROW}, s{sXROW}, s{sT0}')
    E(f's_lshl_b32 s{sXROW}, s{sXROW}, 10')
    E(f'v_lshrrev_b32 v{t}, 3, {ln}')
    E(f'v_lshrrev_b32 v{t+1}, 4, {ln}')
    E(f'v_and_b32 v{t+2}, 7, {ln}')
    E(f'v_xor_b32 v{t+2}, v{t+2}, v{t+1}')
    E(f'v_lshlrev_b32 v{t+2}, 4, v{t+2}')
    E(f'v_lshl_add_u32 v{vXO}, v{t}, 10, v{t+2}')
    E(f'v_xor_b32 v{vXO+1}, 64, v{vXO}')
    E(f'v_lshrrev_b32 v{t}, 4, {ln}')
    E(f'v_and_b32 v{t+1}, 15, {ln}')
    E(f'v_lshlrev_b32 v{t+2}, 2, v{t}')
    E(f'v_xor_b32 v{t+2}, v{t+1}, v{t+2}')
    E(f'v_lshlrev_b32 v{t+2}, 4, v{t+2}')
    E(f'v_lshl_add_u32 v{t+3}, v{t}, 13, v{t+2}')
    E(f's_lshl_b32 s{sT0}, s{sW}, 11')
    E(f's_lshl_b32 s{sT1}, s{sW}, 16')
    E(f's_lshl_b32 s{sT2}, s{sH}, 8')
    E(f's_add_u32 s{sT1}, s{sT1}, s{sT2}')
    for p in range(2):
        E(f's_add_u32 m0, s{sT0}, {xslots(0)[2]*SLOT + p*1024}')
        E(f's_add_u32 s{sT2}, s{sT1}, {p*32768}')
        E(f'buffer_load_dwordx4 v{t+3}, {srd(S_WQ)}, s{sT2} offen {"nt" if 0 < NT0 else NT_W} lds')
    x_dma(0)
    E(f'v_and_b32 v{t}, 31, {ln}')
    E(f'v_lshrrev_b32 v{t+1}, 5, {ln}')
    E(f'v_bfe_u32 v{t+2}, {ln}, 1, 3')
    E(f'v_xor_b32 v{t+2}, v{t+2}, v{t+1}')
    E(f'v_lshlrev_b32 v{t+2}, 4, v{t+2}')
    E(f'v_lshl_add_u32 v{vXL}, v{t}, 7, v{t+2}')
    for s in range(1, 4):
        E(f'v_xor_b32 v{vXL+s}, {32*s}, v{vXL}')
    E(f'v_bfe_u32 v{t+2}, {ln}, 2, 2')
    E(f'v_bfe_u32 v{t+3}, {ln}, 4, 1')
    E(f'v_and_b32 v{t+4}, 1, {ln}')
    E(f'v_bfe_u32 v{t+5}, {ln}, 1, 1')
    E(f'v_lshlrev_b32 v{t+6}, 6, v{t+2}')
    E(f'v_lshl_add_u32 v{t+6}, v{t+3}, 5, v{t+6}')
    E(f'v_lshl_add_u32 v{t+6}, v{t+4}, 4, v{t+6}')
    E(f'v_lshl_add_u32 v{t+6}, v{t+5}, 3, v{t+6}')
    E(f'v_lshl_add_u32 v{t+6}, v{t+2}, 8, v{t+6}')
    E(f'v_lshl_add_u32 v{vWL}, v{t+1}, 11, v{t+6}')
    for j in range(1, 4):
        E(f'v_xor_b32 v{vWL+j}, {64*j}, v{vWL}')
    E(f's_mov_b32 s{sC}, {hex(f32bits(1.4426950408889634 / (128 ** 0.5)))}')
    E(f's_mov_b32 s{sC+1}, s{sC}')
    E(f's_mov_b32 s{sTHR}, 0x53800000')

    def q_reads(n):
        c, s = divmod(n, 4)
        E(f'ds_read_b128 {vr(vXF[n&1],4)}, v{vXA+s}')
        for j in range(4):
            for r in range(2):
                E(f'ds_read_b64_tr_b16 {vr(vWF[n&1]+4*j+2*r,2)}, v{vWA+j} offset:{4096*s+1024*r}')

    def q_chunk_open(c):
        n_after = 0 if c == 0 else (4 if c < 7 else 0)
        E(f's_waitcnt vmcnt({n_after})')
        if c == 0:
            x_dma(1); x_dma(2)
        BAR()
        if 1 <= c <= 5:
            x_dma(c + 2)
        x_base_sgpr(c, sT0)
        for s in range(4):
            E(f'v_add_u32 v{vXA+s}, s{sT0}, v{vXL+s}')
        for j in range(4):
            E(f'v_add_u32 v{vWA+j}, {xslots(c)[2]*SLOT}, v{vWL+j}')

    C('Q projection')
    q_chunk_open(0)
    q_reads(0)
    for n in range(32):
        E('s_waitcnt lgkmcnt(0)')
        if n + 1 < 32:
            if (n + 1) % 4 == 0:
                q_chunk_open((n + 1) // 4)
            q_reads(n + 1)
        for j in range(4):
            mfma(vQA + 16*j, vWF[n&1] + 4*j, vXF[n&1], None if n == 0 else vQA + 16*j)
            if 4 <= n < 20:
                E(f'v_mov_b32 v{vO + 4*(n-4) + j}, 0')

    C('attention addresses')
    E(f'v_and_b32 v{t+2}, 15, {ln}')
    E(f'v_xor_b32 v{t+2}, v{t+2}, v{t+1}')
    E(f'v_lshlrev_b32 v{t+2}, 4, v{t+2}')
    E(f'v_lshl_add_u32 v{t+2}, v{t}, 8, v{t+2}')
    E(f'v_add_u32 v{vKA}, {2*PAIR}, v{t+2}')
    for s in range(1, 8):
        E(f'v_xor_b32 v{vKA+s}, {32*s}, v{vKA}')
    E(f'v_lshl_add_u32 v{t+3}, v{t+1}, 10, v{t+6}')
    E(f'v_add_u32 v{vVA}, {2*PAIR}, v{t+3}')
    for j in range(1, 4):
        E(f'v_xor_b32 v{vVA+j}, {64*j}, v{vVA}')
    E(f's_mov_b32 s{sPAIR}, {2*PAIR}')
    BAR()
    for s in range(8):
        E(f'ds_read_b128 {vr(vF+4*s,4)}, v{vKA+s} offset:{SLOT}')
    C('Q scale + convert')
    E('s_nop 4')
    for j in (3, 2, 1, 0):
        for hf in range(2):
            sp = 2*j + hf
            for e in range(0, 8, 2):
                a = vQA + 16*j + 8*hf + e
                E(f'v_pk_mul_f32 v[{a}:{a+1}], v[{a}:{a+1}], s[{sC}:{sC+1}]')
            for e in range(0, 8, 2):
                a = vQA + 16*j + 8*hf + e
                E(f'v_cvt_pk_bf16_f32 v{vQ+4*sp+e//2}, v{a}, v{a+1}')
    E(f'v_mov_b32 v{vL}, 0')
    E(f'v_mov_b32 v{vL+1}, 0')
    E('s_nop 0')
    C('QK(0)')
    for s in range(8):
        E(f's_waitcnt lgkmcnt({7-s})')
        mfma(vS[0], vF + 4*s, vQ + 4*s, None if s == 0 else vS[0])

    ops = []
    for u in range(32):
        if u + 1 <= 31:
            for s in range(8):
                ops.append(dict(kind='qk', unit=u+1, s=s, it=u))
        if u >= 1:
            for m in range(2):
                for j in range(4):
                    ops.append(dict(kind='pv', unit=u-1, m=m, j=j, it=u))
    for m in range(2):
        for j in range(4):
            ops.append(dict(kind='pv', unit=31, m=m, j=j, it=32))
    N = len(ops)
    def group_of(op):
        return op['unit'] // 2 - 1 if op['kind'] == 'qk' else op['unit'] // 2
    def nlds(op): return 1 if op['kind'] == 'qk' else 2
    def frag_reads(n):
        op = ops[n]; f = vF + 4*(n % NPOOL)
        if op['kind'] == 'qk':
            E(f'ds_read_b128 {vr(f,4)}, v{vKA+op["s"]} offset:{SLOT + 8192*(op["unit"]%2)}')
        else:
            mp = 2*(op['unit'] % 2) + op['m']
            E(f'ds_read_b64_tr_b16 {vr(f,2)}, v{vVA+op["j"]} offset:{4096*mp}')
            E(f'ds_read_b64_tr_b16 {vr(f+2,2)}, v{vVA+op["j"]} offset:{4096*mp+2048}')
    def group_switch():
        E(f's_add_u32 s{sNXT}, s{sPAIR}, {PAIR}')
        E(f's_cmp_eq_u32 s{sNXT}, {LDS_BYTES}')
        E(f's_cselect_b32 s{sNXT}, 0, s{sNXT}')
        E(f's_sub_u32 s{sDELTA}, s{sNXT}, s{sPAIR}')
        E(f's_mov_b32 s{sPAIR}, s{sNXT}')
        for s in range(8):
            E(f'v_add_u32 v{vKA+s}, s{sDELTA}, v{vKA+s}')
        for j in range(4):
            E(f'v_add_u32 v{vVA+j}, s{sDELTA}, v{vVA+j}')
        BAR()
    def sm_ops(p):
        o = [f'v_mov_b64 v[{vLS}:{vLS+1}], v[{vL}:{vL+1}]']
        def fin(k):
            t0 = vT + 2*(k % 4)
            if PKADD:
                o.append(f'v_pk_add_f32 v[{vL}:{vL+1}], v[{vL}:{vL+1}], v[{t0}:{t0+1}]')
            else:
                o.append(f'v_add_f32 v{vL}, v{vL}, v{t0}')
                o.append(f'v_add_f32 v{vL+1}, v{vL+1}, v{t0+1}')
            o.append(f'v_cvt_pk_bf16_f32 v{vP[p]+k}, v{t0}, v{t0+1}')
        for k in range(8):
            t0 = vT + 2*(k % 4)
            o.append(f'v_exp_f32 v{t0}, v{vS[p]+2*k}')
            o.append(f'v_exp_f32 v{t0+1}, v{vS[p]+2*k+1}')
            if k > 0: fin(k-1)
        fin(7)
        return o

    for n in range(LA):
        frag_reads(n)
    C('first-unit max')
    E('s_nop 7')
    def maxtree(p, dst, tmp):
        s = vS[p]
        E(f'v_max3_f32 v{dst}, v{s}, v{s+1}, v{s+2}')
        E(f'v_max3_f32 v{tmp}, v{s+3}, v{s+4}, v{s+5}')
        E(f'v_max3_f32 v{dst}, v{dst}, v{s+6}, v{s+7}')
        E(f'v_max3_f32 v{tmp}, v{tmp}, v{s+8}, v{s+9}')
        E(f'v_max3_f32 v{dst}, v{dst}, v{s+10}, v{s+11}')
        E(f'v_max3_f32 v{tmp}, v{tmp}, v{s+12}, v{s+13}')
        E(f'v_max3_f32 v{dst}, v{dst}, v{s+14}, v{s+15}')
        E(f'v_max_f32 v{dst}, v{dst}, v{tmp}')
        E(f'v_mov_b32 v{tmp}, v{dst}')
        E('s_nop 1')
        E(f'v_permlane32_swap_b32 v{dst}, v{tmp}')
        E('s_nop 1')
        E(f'v_max_f32 v{dst}, v{dst}, v{tmp}')
    maxtree(0, vT, vT+1)
    for i in range(16):
        E(f'v_sub_f32 v{vNM+i}, 0, v{vT}')
        E(f'v_sub_f32 v{vS[0]+i}, v{vS[0]+i}, v{vT}')

    it_first = {}
    it_last = {}
    for n, op in enumerate(ops):
        it_first.setdefault(op['it'], n)
        it_last[op['it']] = n

    def emit_slots(n0, n1):
        for n in range(n0, n1):
            op = ops[n]
            u = op['it']
            cnt = sum(nlds(ops[k]) for k in range(n+1, min(n+LA, N)))
            E(f's_waitcnt lgkmcnt({cnt})')
            f = vF + 4*(n % NPOOL)
            if op['kind'] == 'qk':
                p = op['unit'] % 2
                mfma(vS[p], f, vQ + 4*op['s'], vNM if op['s'] == 0 else vS[p])
            else:
                p = op['unit'] % 2
                mfma(vO + 16*op['j'], f, vP[p] + 4*op['m'], vO + 16*op['j'])
            if n + LA < N:
                if group_of(ops[n+LA]) != group_of(ops[n+LA-1]):
                    group_switch()
                frag_reads(n + LA)
            if u <= 31:
                so = sm_ops(u % 2)
                ns = it_last[u] - it_first[u] + 1
                k = n - it_first[u]
                lo = (len(so) * k) // ns
                hi = (len(so) * (k+1)) // ns
                for x in so[lo:hi]:
                    E(x)
                if n == it_last[u]:
                    tag = f'{u}'
                    E(f'v_add_f32 v{vT}, v{vL}, v{vL+1}')
                    E(f'v_cmp_nge_f32 vcc, s{sTHR}, v{vT}')
                    E(f's_cbranch_vccnz K1_RARE_{tag}')
                    LB(f'K1_BACK_{tag}')
                    rare_sites.append((tag, u % 2))

    rare_sites = []
    emit_slots(it_first[0], it_last[0] + 1)
    E(f's_mov_b32 s{sCNT}, 15')
    LB('K1_LOOP')
    mark = len(L)
    emit_slots(it_first[1], it_last[2] + 1)
    body0 = L[mark:]
    E(f's_sub_u32 s{sCNT}, s{sCNT}, 1')
    E(f's_cmp_lg_u32 s{sCNT}, 0')
    E('s_cbranch_scc1 K1_LOOP')
    save = list(L); rs = list(rare_sites)
    mark = len(L)
    emit_slots(it_first[3], it_last[4] + 1)
    body1 = [x.replace('_3', '_1').replace('_4', '_2') if 'K1_' in x else x for x in L[mark:]]
    assert body0 == body1, 'loop body not periodic'
    del L[len(save):]; rare_sites[:] = rs
    E('s_waitcnt lgkmcnt(0)')
    for n in range(it_first[31], it_first[31] + LA):
        frag_reads(n)
    emit_slots(it_first[31], N)

    C('epilogue')
    stamp()
    E('s_nop 15')
    E(f'v_add_f32 v{vT}, v{vL}, v{vL+1}')
    E(f'v_add_f32 v{vT+1}, v{vL}, v{vL+1}')
    E('s_nop 1')
    E(f'v_permlane32_swap_b32 v{vT}, v{vT+1}')
    E('s_nop 1')
    E(f'v_add_f32 v{vT}, v{vT}, v{vT+1}')
    E(f'v_rcp_f32 v{vT}, v{vT}')
    E(f's_mul_i32 s{sT0}, s{sB}, 7')
    E(f's_add_u32 s{sT0}, s{sT0}, s{sW}')
    E(f's_lshl_b32 s{sT0}, s{sT0}, 8')
    E(f's_lshl_b32 s{sT1}, s{sH}, 3')
    E(f's_add_u32 s{sT0}, s{sT0}, s{sT1}')
    E(f's_lshl_b32 s{sT0}, s{sT0}, 10')
    E(f's_add_u32 s{sT1}, s{sT0}, 4096')
    E(f'v_lshlrev_b32 v{vT+1}, 4, {ln}')
    for sp in range(8):
        j, hf = divmod(sp, 2)
        d = vF + 4*sp
        for e in range(0, 8, 2):
            a = vO + 16*j + 8*hf + e
            E(f'v_mul_f32 v{a}, v{vT}, v{a}')
            E(f'v_mul_f32 v{a+1}, v{vT}, v{a+1}')
            E(f'v_cvt_pk_bf16_f32 v{d+e//2}, v{a}, v{a+1}')
        E(f'buffer_store_dwordx4 {vr(d,4)}, v{vT+1}, {srd(S_WS)}, s{sT0 if sp < 4 else sT1} offen offset:{1024*(sp%4)} {NT_OST}')
    stamp()
    if PROF:
        E('s_waitcnt vmcnt(0)')
        stamp()
        stamp(True)
    prof_dump(sW, S_WS)
    dbg_end(0, 0, False, sW, S_WS)
    E('s_endpgm')

    for tag, p in rare_sites:
        LB(f'K1_RARE_{tag}')
        E('s_nop 15')
        E('s_nop 3')
        maxtree(p, vT, vT+1)
        E(f'v_max_f32 v{vT}, 0, v{vT}')
        E(f'v_exp_f32 v{vT+1}, -v{vT}')
        E('s_nop 0')
        for i in range(64):
            E(f'v_mul_f32 v{vO+i}, v{vT+1}, v{vO+i}')
        E(f'v_mul_f32 v{vL}, v{vT+1}, v{vLS}')
        E(f'v_mul_f32 v{vL+1}, v{vT+1}, v{vLS+1}')
        for i in range(16):
            E(f'v_sub_f32 v{vNM+i}, v{vNM+i}, v{vT}')
            E(f'v_sub_f32 v{vS[0]+i}, v{vS[0]+i}, v{vT}')
            E(f'v_sub_f32 v{vS[1]+i}, v{vS[1]+i}, v{vT}')
        for x in sm_ops(p)[1:]:
            x = x
            E(x)
        E('s_nop 1')
        E(f's_branch K1_BACK_{tag}')

def k1_loader():
    ln = f'v{vLANE}'
    vKo, vVo, vWo = 2, 6, 7
    C('loader wave')
    if 'L' in PRIO: E('s_setprio 3')
    E(f'v_lshrrev_b32 v10, 4, {ln}')
    E(f'v_and_b32 v11, 15, {ln}')
    E('v_xor_b32 v12, v11, v10')
    E('v_lshlrev_b32 v12, 4, v12')
    E(f'v_lshl_add_u32 v{vKo}, v10, 8, v12')
    for pp in range(1, 4):
        E(f'v_xor_b32 v{vKo+pp}, {64*pp}, v{vKo}')
    E('v_lshlrev_b32 v12, 2, v10')
    E('v_xor_b32 v12, v11, v12')
    E('v_lshlrev_b32 v12, 4, v12')
    E(f'v_lshl_add_u32 v{vVo}, v10, 8, v12')
    E(f'v_lshl_add_u32 v{vWo}, v10, 13, v12')
    E(f's_lshl_b32 s{sT3}, s{sH}, 8')

    def wq_fill(c):
        sl = xslots(c)[2]
        for p in range(14 if c == 0 else 0, 16):
            E(f's_mov_b32 m0, {sl*SLOT + p*1024}')
            E(f's_add_u32 s{sT1}, s{sT3}, {(64*c + 4*p) * 8192}')
            E(f'buffer_load_dwordx4 v{vWo}, {srd(S_WQ)}, s{sT1} offen {"nt" if c < NT0 else NT_W} lds')
    def kv_fill(which, tile, ldsbase):
        for g in range(4):
            E(f's_mov_b32 m0, {ldsbase + g*4096}')
            E(f's_mov_b32 s{sT1}, {tile*16384 + g*4096}')
            for pp in range(4):
                vo = vKo + pp if which == 'K' else vVo
                E(f'buffer_load_dwordx4 v{vo}, {srd(S_K if which=="K" else S_V)}, s{sT1} offen offset:{1024*pp} {NT_KV} lds')
    def group_fill(t):
        pair = (3 + t) % 5
        kv_fill('V', t, pair*PAIR)
        if t + 1 <= 15:
            kv_fill('K', t + 1, pair*PAIR + SLOT)

    wq_fill(0)
    wq_fill(1)
    E('s_waitcnt vmcnt(16)')
    BAR()
    wq_fill(2)
    for c in range(1, 6):
        E('s_waitcnt vmcnt(16)'); BAR()
        wq_fill(c + 2)
    E('s_waitcnt vmcnt(16)'); BAR()
    kv_fill('K', 0, 2*PAIR + SLOT)
    E('s_waitcnt vmcnt(16)'); BAR()
    group_fill(0)
    E(f'v_and_b32 v10, 0x13, {ln}')
    E(f'v_bfe_u32 v11, {ln}, 2, 1')
    E(f'v_bfe_u32 v12, {ln}, 3, 1')
    E('v_lshl_add_u32 v10, v11, 3, v10')
    E('v_lshl_add_u32 v10, v12, 2, v10')
    E('v_lshlrev_b32 v10, 1, v10')
    E(f'v_lshrrev_b32 v11, 5, {ln}')
    E('v_lshl_add_u32 v10, v11, 13, v10')
    E(f'v_add_u32 v11, 4096, v10')
    E(f'v_lshlrev_b32 v12, 4, {ln}')
    E(f's_lshl_b32 s{sT0}, s2, 14')
    E(f's_lshl_b32 s{sT2}, s2, 10')
    E(f's_add_u32 s{sT2}, s{sT2}, {WS_W_OFF}')
    def wo_loads(nb):
        d = 16 + 8*nb
        E(f's_add_u32 s{sT1}, s{sT0}, {nb*64}')
        for e in range(8):
            va = 10 if e < 4 else 11
            E(f'buffer_load_ushort v{d+e}, v{va}, {srd(S_WO)}, s{sT1} offen offset:{1024*(e%4)} {NT_WOL}')
    def wo_store(k):
        dd = 16 + 8*k
        for e in range(0, 8, 2):
            E(f'v_lshl_or_b32 v{160+4*k+e//2}, v{dd+e+1}, 16, v{dd+e}')
        E(f's_add_u32 s{sT1}, s{sT2}, {k*256*1024}')
        E(f'buffer_store_dwordx4 {vr(160+4*k,4)}, v12, {srd(S_WS)}, s{sT1} offen {NT_OST}')
    log = ['K0']*16 + ['g0']*32
    def wait_for(tag):
        last = max(i for i, x in enumerate(log) if x == tag)
        n = len(log) - 1 - last
        E(f's_waitcnt vmcnt({min(n, 63)})')
    wait_for('K0'); BAR()
    group_fill(1); log += ['g1']*32
    for t in range(0, 16):
        wait_for(f'g{t}'); BAR()
        if 2 <= t <= 9:
            wo_store(2*(t-2)); wo_store(2*(t-2)+1); log += ['s']*2
        if t <= 7:
            wo_loads(2*t); wo_loads(2*t+1); log += ['w']*16
        if t + 2 <= 15:
            group_fill(t + 2); log += [f'g{t+2}']*(32 if t + 2 < 15 else 16)

def k2():
    L.append('.globl mha_oproj_kernel')
    L.append('.p2align 8')
    L.append('.type mha_oproj_kernel,@function')
    LB('mha_oproj_kernel')
    S_WS2, S_OUT = 4, 8
    E('s_cmp_ge_u32 s2, 224')
    E('s_cbranch_scc1 K2_END')
    dbg_begin()
    E('s_load_dwordx2 s[12:13], s[0:1], 40')
    E('s_load_dwordx2 s[14:15], s[0:1], 56')
    E('s_and_b32 s16, s2, 7')
    E('s_lshr_b32 s17, s2, 3')
    E('s_mul_i32 s18, s17, 37')
    E('s_lshr_b32 s18, s18, 8')
    E('s_mul_i32 s19, s18, 7')
    E('s_sub_u32 s19, s17, s19')
    E('s_lshr_b32 s20, s16, 1')
    E('s_mul_i32 s20, s20, 7')
    E('s_add_u32 s20, s20, s19')
    E('s_and_b32 s21, s16, 1')
    E('s_lshl_b32 s21, s21, 2')
    E('s_add_u32 s21, s21, s18')
    E('v_lshrrev_b32 v193, 6, v0')
    E('v_and_b32 v194, 63, v0')
    E('s_nop 0')
    E('v_readfirstlane_b32 s22, v193')
    E('v_lshlrev_b32 v195, 4, v194')
    E('s_waitcnt lgkmcnt(0)')
    mk_srd(S_WS2, 14, 15, WS_USED)
    mk_srd(S_OUT, 12, 13, 8*224*512*2)
    if PROF:
        E(f's_mov_b32 s{sPIDX}, 0')
        E(f'v_mov_b32 v{vPROF}, 0')
    stamp(True)
    stamp()
    E(f's_lshl_b32 s23, s22, {10 if K2MODE == "str" else 15}')
    E('s_lshl_b32 s24, s20, 19')
    E('v_add_u32 v204, s24, v195')
    E('v_add_u32 v205, 0x40000, v204')
    E('s_lshl_b32 s26, s21, 19')
    E(f's_add_u32 s26, s26, {WS_W_OFF}')
    E('v_add_u32 v206, s26, v195')
    E('v_add_u32 v207, 0x40000, v206')
    ACC = 0
    BUF = 64
    DEPTH = K2DEPTH
    def loads(ks):
        d = BUF + 16*(ks % DEPTH)
        if ks > 0:
            E(f's_add_u32 s23, s23, {8192 if K2MODE == "str" else 1024}')
        for st in range(4):
            E(f'buffer_load_dwordx4 {vr(d+4*st,4)}, v{204+st}, {srd(S_WS2)}, s23 offen {NT_K2}')
    for ks in range(DEPTH - 1):
        loads(ks)
    for ks in range(32):
        if ks + DEPTH - 1 < 32:
            loads(ks + DEPTH - 1)
        rem = min(32 - 1 - ks, DEPTH - 1)
        E(f's_waitcnt vmcnt({4*rem})')
        d = BUF + 16*(ks % DEPTH)
        for a in range(2):
            for b_ in range(2):
                acc = ACC + 16*(2*a + b_)
                mfma(acc, d + 8 + 4*a, d + 4*b_, None if ks == 0 else acc)
    stamp()
    E('s_nop 15')
    E('s_lshl_b32 s23, s22, 14')
    E('v_add_u32 v196, s23, v195')
    for sl in range(8):
        for q4 in range(2):
            r = ACC + 8*sl + 4*q4
            E(f'ds_write_b128 v196, {vr(r,4)} offset:{sl*2048 + q4*1024}')
    E('s_waitcnt lgkmcnt(0)')
    E('s_barrier')
    E('s_lshl_b32 s23, s22, 11')
    E('v_add_u32 v196, s23, v195')
    E('v_add_u32 v197, 0x10000, v196')
    for p in range(8):
        va = 196 if p < 4 else 197
        for q4 in range(2):
            E(f'ds_read_b128 {vr(64+8*p+4*q4,4)}, v{va} offset:{(p%4)*16384 + q4*1024}')
    E('s_lshr_b32 s24, s22, 2')
    E('s_bfe_u32 s25, s22, 0x10001')
    E('s_and_b32 s26, s22, 1')
    E('s_lshl_b32 s27, s20, 6')
    E('s_lshl_b32 s25, s25, 5')
    E('s_add_u32 s27, s27, s25')
    E('s_lshl_b32 s27, s27, 10')
    E('s_lshl_b32 s28, s21, 7')
    E('s_lshl_b32 s24, s24, 6')
    E('s_lshl_b32 s26, s26, 5')
    E('s_add_u32 s27, s27, s28')
    E('s_add_u32 s27, s27, s24')
    E('s_add_u32 s27, s27, s26')
    E('v_and_b32 v198, 31, v194')
    E('v_lshrrev_b32 v199, 5, v194')
    E('v_lshlrev_b32 v199, 4, v199')
    E('v_lshl_add_u32 v198, v198, 10, v199')
    for p in range(1, 8):
        E(f's_waitcnt lgkmcnt({2*(7-p)})')
        for i in range(8):
            E(f'v_add_f32 v{64+i}, v{64+i}, v{64+8*p+i}')
    for i in range(4):
        E(f'v_cvt_pk_bf16_f32 v{200+i}, v{64+2*i}, v{64+2*i+1}')
    E(f'buffer_store_dwordx4 v[200:203], v198, {srd(S_OUT)}, s27 offen')
    if PROF:
        E('s_waitcnt vmcnt(0)')
        stamp()
        stamp(True)
    prof_dump(22, S_WS2, 1024*1024)
    dbg_end(0, 32, True, 22, S_WS2)
    LB('K2_END')
    E('s_endpgm')

header()
k1()
k2()
kd('mha_attn_kernel', 244 if PROF else 236, 96 if DBG else 72)
kd('mha_oproj_kernel', 244 if PROF else 208, 96 if DBG else (72 if PROF else 40))
open(OUT, 'w').write('\n'.join(L) + '\n')
print('wrote', OUT, len(L), 'lines')
```

```python
import sys, struct

OUT = sys.argv[1] if len(sys.argv) > 1 else 'standalone__mha_block_cached__near_ridge.s'

import os
PROF = int(os.environ.get('PROF', '0'))
DBG = int(os.environ.get('DBG', '0'))
ALIGN = os.environ.get('ALIGN', '6')
NT0 = int(os.environ.get('NT0', '0'))
PKADD = int(os.environ.get('PKADD', '0'))
PRIO = os.environ.get('PRIO', '')
K2MODE = os.environ.get('K2MODE', 'blk')
K2DEPTH = int(os.environ.get('K2DEPTH', '8'))
NT_KV = os.environ.get('NT_KV', 'nt')
NT_X = os.environ.get('NT_X', '')
NT_W = os.environ.get('NT_W', '')
NT_OST = os.environ.get('NT_OST', 'sc0+sc1').replace('+',' ')
NT_K2 = os.environ.get('NT_K2', '').replace('+',' ')
NT_WOL = os.environ.get('NT_WOL', '').replace('+',' ')
L = []
def E(s): L.append('  ' + s)
def LB(s): L.append(s + ':')
def C(s): L.append('  ; ' + s)

def f32bits(x): return struct.unpack('<I', struct.pack('<f', x))[0]

WS_W_OFF = 16 * 1024 * 1024
WS_USED = WS_W_OFF + 4 * 1024 * 1024
WS_PROF = 32 * 1024 * 1024
if PROF: WS_USED = WS_PROF + 2 * 1024 * 1024
if DBG: WS_USED += 4096
vPROF = 240
sPIDX = 70
def stamp(rt=False):
    if not PROF: return
    E('s_memrealtime s[66:67]' if rt else 's_memtime s[66:67]')
    E('s_waitcnt lgkmcnt(0)')
    E(f's_mov_b32 m0, s{sPIDX}')
    E('s_nop 0')
    E(f'v_writelane_b32 v{vPROF}, s66, m0')
    E(f's_add_u32 s{sPIDX}, s{sPIDX}, 1')
def prof_dump(swave, srdn, extra=0):
    if not PROF: return
    E(f's_lshl_b32 s66, s2, 3')
    E(f's_add_u32 s66, s66, s{swave}')
    E(f's_lshl_b32 s66, s66, 8')
    E(f's_add_u32 s66, s66, {WS_PROF + extra}')
    E(f'v_mbcnt_lo_u32_b32 v{vPROF+1}, -1, 0')
    E(f'v_mbcnt_hi_u32_b32 v{vPROF+1}, -1, v{vPROF+1}')
    E(f'v_lshlrev_b32 v{vPROF+1}, 2, v{vPROF+1}')
    E(f'buffer_store_dword v{vPROF}, v{vPROF+1}, s[{srdn}:{srdn+3}], s66 offen')
def dbg_begin():
    if not DBG: return
    E('s_memrealtime s[80:81]')
    E('s_memtime s[82:83]')
    E('s_load_dwordx2 s[84:85], s[0:1], 48')
    E('s_waitcnt lgkmcnt(0)')
    E('s_mov_b32 s88, s84')
    E('s_and_b32 s89, s85, 0xffff')
    E('s_mov_b32 s90, 256')
    E('s_mov_b32 s91, 0x20000')
def dbg_end(v, base, k2=False, swave=None, wsrd=None):
    if not DBG: return
    lab = f'DBGSKIP{base}'
    E('s_cmp_lg_u32 s2, 0')
    E(f's_cbranch_scc1 {lab}')
    E(f's_cmp_lg_u32 s{swave}, {0 if k2 else (4 if base == 0 else 7)}')
    E(f's_cbranch_scc1 {lab}')
    E('s_waitcnt vmcnt(0)')
    E('s_memrealtime s[84:85]')
    E('s_memtime s[86:87]')
    E('s_waitcnt lgkmcnt(0)')
    E('s_sub_u32 s86, s86, s82')
    E(f'v_mov_b32 v{v}, 0')
    E(f'v_mov_b32 v{v+4}, s80')
    E(f'v_mov_b32 v{v+5}, s84')
    E(f'v_mov_b32 v{v+6}, s86')
    E(f'v_mov_b32 v{v+7}, 0')
    E('s_mov_b64 exec, 1')
    E(f's_mov_b32 s84, {WS_USED - 4096}')
    if not k2:
        E(f'buffer_store_dwordx4 v[{v+4}:{v+7}], v{v}, s[{wsrd}:{wsrd+3}], s84 offen offset:{base}')
    else:
        E(f'buffer_store_dwordx4 v[{v+4}:{v+7}], v{v}, s[88:91], 0 offen offset:{base}')
        E(f'buffer_load_dwordx4 v[{v+8}:{v+11}], v{v}, s[{wsrd}:{wsrd+3}], s84 offen offset:0')
        E(f'buffer_load_dwordx4 v[{v+12}:{v+15}], v{v}, s[{wsrd}:{wsrd+3}], s84 offen offset:16')
        E('s_waitcnt vmcnt(0)')
        E(f'buffer_store_dwordx4 v[{v+8}:{v+11}], v{v}, s[88:91], 0 offen offset:0')
        E(f'buffer_store_dwordx4 v[{v+12}:{v+15}], v{v}, s[88:91], 0 offen offset:16')
    LB(lab)
def BAR():
    stamp()
    E('s_barrier')
    stamp(PROF == 2)

SLOT = 16384
PAIR = 32768
LDS_BYTES = 163840

S_X, S_K, S_V, S_WQ, S_WS, S_WO = 4, 8, 12, 16, 20, 24
sB, sH, sW = 28, 29, 30
sT0, sT1, sT2, sT3 = 48, 49, 50, 51
sXROW, sWGE4, sW4 = 52, 53, 54
sPAIR, sNXT, sDELTA, sCNT, sTHR = 55, 56, 57, 58, 59
sC = 60

def srd(n): return f's[{n}:{n+3}]'
def vr(a, n): return f'v[{a}:{a+n-1}]'

vO = 0
vS = [64, 80]
vNM = 96
vQ = 112
vP = [144, 152]
vF = 160
vKA = 192
vVA = 200
vT = 204
vL, vLS = 232, 234
vQA = 64
vXO = 214
vXL = 216
vLANE = 220
vWL = 221
vTMP = 225
vXF = [144, 148]
vWF = [160, 176]
vXA = 192
vWA = 200

LA = 6
NPOOL = 8

def header():
    L.append('; Kernarg layout for this problem (64 bytes, ptrs only, base s[0:1]):')
    L.append(f'; @launch kernel=mha_attn_kernel grid=(256,1,1) block=(512,1,1) lds={LDS_BYTES}')
    L.append('; @launch kernel=mha_oproj_kernel grid=(224,1,1) block=(512,1,1) lds=131072')
    L.append('.amdgcn_target "amdgcn-amd-amdhsa--gfx950"')
    L.append('.text')

def kd(name, vgpr, sgpr):
    L.append('.section .rodata,"a"')
    L.append('.p2align 6')
    L.append(f'.amdhsa_kernel {name}')
    L.append(f'  .amdhsa_next_free_vgpr {vgpr}')
    L.append(f'  .amdhsa_next_free_sgpr {sgpr}')
    L.append(f'  .amdhsa_accum_offset {(vgpr+3)//4*4}')
    L.append('  .amdhsa_group_segment_fixed_size 0')
    L.append('  .amdhsa_kernarg_size 64')
    L.append('  .amdhsa_user_sgpr_count 2')
    L.append('  .amdhsa_user_sgpr_kernarg_segment_ptr 1')
    L.append('  .amdhsa_system_sgpr_workgroup_id_x 1')
    L.append('.end_amdhsa_kernel')
    L.append('.text')

def mk_srd(n, lo, hi, size):
    E(f's_mov_b32 s{n}, s{lo}')
    E(f's_and_b32 s{n+1}, s{hi}, 0xffff')
    E(f's_mov_b32 s{n+2}, {size}')
    E(f's_mov_b32 s{n+3}, 0x20000')

def mfma(d, a, b, c):
    cs = '0' if c is None else vr(c, 16)
    E(f'v_mfma_f32_32x32x16_bf16 {vr(d,16)}, {vr(a,4)}, {vr(b,4)}, {cs}')

def k1():
    L.append('.globl mha_attn_kernel')
    L.append('.p2align 8')
    L.append('.type mha_attn_kernel,@function')
    LB('mha_attn_kernel')
    E('s_cmp_ge_u32 s2, 256')
    E('s_cbranch_scc1 K1_END')
    dbg_begin()
    E('s_load_dwordx16 s[32:47], s[0:1], 0')
    E('s_and_b32 s48, s2, 7')
    E('s_lshr_b32 s49, s2, 3')
    E('s_and_b32 s50, s48, 1')
    E('s_lshl_b32 s50, s50, 2')
    E('s_and_b32 s51, s49, 3')
    E(f's_add_u32 s{sB}, s50, s51')
    E('s_lshr_b32 s50, s48, 1')
    E('s_lshl_b32 s50, s50, 3')
    E('s_lshr_b32 s51, s49, 2')
    E(f's_add_u32 s{sH}, s50, s51')
    E(f'v_lshrrev_b32 v1, 6, v0')
    E(f'v_and_b32 v{vLANE}, 63, v0')
    E('s_nop 0')
    E(f'v_readfirstlane_b32 s{sW}, v1')
    E('s_waitcnt lgkmcnt(0)')
    mk_srd(S_X, 32, 33, 8*224*512*2)
    E(f's_lshl_b32 s48, s{sB}, 5')
    E(f's_add_u32 s48, s48, s{sH}')
    E('s_lshl_b32 s49, s48, 18')
    E('s_lshr_b32 s50, s48, 14')
    E('s_add_u32 s34, s34, s49')
    E('s_addc_u32 s35, s35, s50')
    E('s_add_u32 s36, s36, s49')
    E('s_addc_u32 s37, s37, s50')
    mk_srd(S_K, 34, 35, 262144)
    mk_srd(S_V, 36, 37, 262144)
    mk_srd(S_WQ, 38, 39, 512*4096*2)
    mk_srd(S_WO, 40, 41, 4096*512*2)
    mk_srd(S_WS, 46, 47, WS_USED)
    if PROF:
        E(f's_mov_b32 s{sPIDX}, 0')
        E(f'v_mov_b32 v{vPROF}, 0')
    stamp(True)
    stamp()
    E(f's_cmp_eq_u32 s{sW}, 7')
    E('s_cbranch_scc1 K1_LOADER')
    k1_compute()
    LB('K1_LOADER')
    k1_loader()
    if PROF:
        E('s_waitcnt vmcnt(0)')
        stamp()
        stamp(True)
    prof_dump(sW, S_WS)
    dbg_end(0, 16, False, sW, S_WS)
    LB('K1_END')
    E('s_endpgm')

def xslots(c):
    return (3*c) % 10, (3*c+1) % 10, (3*c+2) % 10

def x_base_sgpr(c, dst):
    a, b_, _ = xslots(c)
    E(f's_mul_i32 s{dst}, s{sWGE4}, {(b_-a)*SLOT}')
    E(f's_add_u32 s{dst}, s{dst}, {a*SLOT}')
    E(f's_add_u32 s{dst}, s{dst}, s{sW4}')

def x_dma(c):
    x_base_sgpr(c, sT0)
    for p in range(4):
        E(f's_add_u32 m0, s{sT0}, {p*1024}')
        E(f's_add_u32 s{sT1}, s{sXROW}, {p*8192 + c*128}')
        E(f'buffer_load_dwordx4 v{vXO+(p&1)}, {srd(S_X)}, s{sT1} offen {"nt" if c < NT0 else NT_X} lds')

def k1_compute():
    ln = f'v{vLANE}'
    t = vTMP
    C('lane-derived constants')
    E(f's_cmp_ge_u32 s{sW}, 4')
    E(f's_cselect_b32 s{sWGE4}, 1, 0')
    if 'Y' in PRIO:
        E('s_cbranch_scc0 K1_NOPRIO')
        E('s_setprio 1')
        LB('K1_NOPRIO')
    if 'O' in PRIO:
        E('s_cbranch_scc1 K1_NOPRIO')
        E('s_setprio 1')
        LB('K1_NOPRIO')
    E(f's_and_b32 s{sW4}, s{sW}, 3')
    E(f's_lshl_b32 s{sW4}, s{sW4}, 12')
    E(f's_mul_i32 s{sXROW}, s{sB}, 224')
    E(f's_lshl_b32 s{sT0}, s{sW}, 5')
    E(f's_add_u32 s{sXROW}, s{sXROW}, s{sT0}')
    E(f's_lshl_b32 s{sXROW}, s{sXROW}, 10')
    E(f'v_lshrrev_b32 v{t}, 3, {ln}')
    E(f'v_lshrrev_b32 v{t+1}, 4, {ln}')
    E(f'v_and_b32 v{t+2}, 7, {ln}')
    E(f'v_xor_b32 v{t+2}, v{t+2}, v{t+1}')
    E(f'v_lshlrev_b32 v{t+2}, 4, v{t+2}')
    E(f'v_lshl_add_u32 v{vXO}, v{t}, 10, v{t+2}')
    E(f'v_xor_b32 v{vXO+1}, 64, v{vXO}')
    E(f'v_lshrrev_b32 v{t}, 4, {ln}')
    E(f'v_and_b32 v{t+1}, 15, {ln}')
    E(f'v_lshlrev_b32 v{t+2}, 2, v{t}')
    E(f'v_xor_b32 v{t+2}, v{t+1}, v{t+2}')
    E(f'v_lshlrev_b32 v{t+2}, 4, v{t+2}')
    E(f'v_lshl_add_u32 v{t+3}, v{t}, 13, v{t+2}')
    E(f's_lshl_b32 s{sT0}, s{sW}, 11')
    E(f's_lshl_b32 s{sT1}, s{sW}, 16')
    E(f's_lshl_b32 s{sT2}, s{sH}, 8')
    E(f's_add_u32 s{sT1}, s{sT1}, s{sT2}')
    for p in range(2):
        E(f's_add_u32 m0, s{sT0}, {xslots(0)[2]*SLOT + p*1024}')
        E(f's_add_u32 s{sT2}, s{sT1}, {p*32768}')
        E(f'buffer_load_dwordx4 v{t+3}, {srd(S_WQ)}, s{sT2} offen {"nt" if 0 < NT0 else NT_W} lds')
    x_dma(0)
    E(f'v_and_b32 v{t}, 31, {ln}')
    E(f'v_lshrrev_b32 v{t+1}, 5, {ln}')
    E(f'v_bfe_u32 v{t+2}, {ln}, 1, 3')
    E(f'v_xor_b32 v{t+2}, v{t+2}, v{t+1}')
    E(f'v_lshlrev_b32 v{t+2}, 4, v{t+2}')
    E(f'v_lshl_add_u32 v{vXL}, v{t}, 7, v{t+2}')
    for s in range(1, 4):
        E(f'v_xor_b32 v{vXL+s}, {32*s}, v{vXL}')
    E(f'v_bfe_u32 v{t+2}, {ln}, 2, 2')
    E(f'v_bfe_u32 v{t+3}, {ln}, 4, 1')
    E(f'v_and_b32 v{t+4}, 1, {ln}')
    E(f'v_bfe_u32 v{t+5}, {ln}, 1, 1')
    E(f'v_lshlrev_b32 v{t+6}, 6, v{t+2}')
    E(f'v_lshl_add_u32 v{t+6}, v{t+3}, 5, v{t+6}')
    E(f'v_lshl_add_u32 v{t+6}, v{t+4}, 4, v{t+6}')
    E(f'v_lshl_add_u32 v{t+6}, v{t+5}, 3, v{t+6}')
    E(f'v_lshl_add_u32 v{t+6}, v{t+2}, 8, v{t+6}')
    E(f'v_lshl_add_u32 v{vWL}, v{t+1}, 11, v{t+6}')
    for j in range(1, 4):
        E(f'v_xor_b32 v{vWL+j}, {64*j}, v{vWL}')
    E(f's_mov_b32 s{sC}, {hex(f32bits(1.4426950408889634 / (128 ** 0.5)))}')
    E(f's_mov_b32 s{sC+1}, s{sC}')
    E(f's_mov_b32 s{sTHR}, 0x53800000')

    def q_reads(n):
        c, s = divmod(n, 4)
        E(f'ds_read_b128 {vr(vXF[n&1],4)}, v{vXA+s}')
        for j in range(4):
            for r in range(2):
                E(f'ds_read_b64_tr_b16 {vr(vWF[n&1]+4*j+2*r,2)}, v{vWA+j} offset:{4096*s+1024*r}')

    def q_chunk_open(c):
        n_after = 0 if c == 0 else (4 if c < 7 else 0)
        E(f's_waitcnt vmcnt({n_after})')
        if c == 0:
            x_dma(1); x_dma(2)
        BAR()
        if 1 <= c <= 5:
            x_dma(c + 2)
        x_base_sgpr(c, sT0)
        for s in range(4):
            E(f'v_add_u32 v{vXA+s}, s{sT0}, v{vXL+s}')
        for j in range(4):
            E(f'v_add_u32 v{vWA+j}, {xslots(c)[2]*SLOT}, v{vWL+j}')

    C('Q projection')
    q_chunk_open(0)
    q_reads(0)
    for n in range(32):
        E('s_waitcnt lgkmcnt(0)')
        if n + 1 < 32:
            if (n + 1) % 4 == 0:
                q_chunk_open((n + 1) // 4)
            q_reads(n + 1)
        for j in range(4):
            mfma(vQA + 16*j, vWF[n&1] + 4*j, vXF[n&1], None if n == 0 else vQA + 16*j)
            if 4 <= n < 20:
                E(f'v_mov_b32 v{vO + 4*(n-4) + j}, 0')

    C('attention addresses')
    E(f'v_and_b32 v{t+2}, 15, {ln}')
    E(f'v_xor_b32 v{t+2}, v{t+2}, v{t+1}')
    E(f'v_lshlrev_b32 v{t+2}, 4, v{t+2}')
    E(f'v_lshl_add_u32 v{t+2}, v{t}, 8, v{t+2}')
    E(f'v_add_u32 v{vKA}, {2*PAIR}, v{t+2}')
    for s in range(1, 8):
        E(f'v_xor_b32 v{vKA+s}, {32*s}, v{vKA}')
    E(f'v_lshl_add_u32 v{t+3}, v{t+1}, 10, v{t+6}')
    E(f'v_add_u32 v{vVA}, {2*PAIR}, v{t+3}')
    for j in range(1, 4):
        E(f'v_xor_b32 v{vVA+j}, {64*j}, v{vVA}')
    E(f's_mov_b32 s{sPAIR}, {2*PAIR}')
    BAR()
    for s in range(8):
        E(f'ds_read_b128 {vr(vF+4*s,4)}, v{vKA+s} offset:{SLOT}')
    C('Q scale + convert')
    E('s_nop 4')
    for j in (3, 2, 1, 0):
        for hf in range(2):
            sp = 2*j + hf
            for e in range(0, 8, 2):
                a = vQA + 16*j + 8*hf + e
                E(f'v_pk_mul_f32 v[{a}:{a+1}], v[{a}:{a+1}], s[{sC}:{sC+1}]')
            for e in range(0, 8, 2):
                a = vQA + 16*j + 8*hf + e
                E(f'v_cvt_pk_bf16_f32 v{vQ+4*sp+e//2}, v{a}, v{a+1}')
    E(f'v_mov_b32 v{vL}, 0')
    E(f'v_mov_b32 v{vL+1}, 0')
    E('s_nop 0')
    C('QK(0)')
    for s in range(8):
        E(f's_waitcnt lgkmcnt({7-s})')
        mfma(vS[0], vF + 4*s, vQ + 4*s, None if s == 0 else vS[0])

    ops = []
    for u in range(32):
        if u + 1 <= 31:
            for s in range(8):
                ops.append(dict(kind='qk', unit=u+1, s=s, it=u))
        if u >= 1:
            for m in range(2):
                for j in range(4):
                    ops.append(dict(kind='pv', unit=u-1, m=m, j=j, it=u))
    for m in range(2):
        for j in range(4):
            ops.append(dict(kind='pv', unit=31, m=m, j=j, it=32))
    N = len(ops)
    def group_of(op):
        return op['unit'] // 2 - 1 if op['kind'] == 'qk' else op['unit'] // 2
    def nlds(op): return 1 if op['kind'] == 'qk' else 2
    def frag_reads(n):
        op = ops[n]; f = vF + 4*(n % NPOOL)
        if op['kind'] == 'qk':
            E(f'ds_read_b128 {vr(f,4)}, v{vKA+op["s"]} offset:{SLOT + 8192*(op["unit"]%2)}')
        else:
            mp = 2*(op['unit'] % 2) + op['m']
            E(f'ds_read_b64_tr_b16 {vr(f,2)}, v{vVA+op["j"]} offset:{4096*mp}')
            E(f'ds_read_b64_tr_b16 {vr(f+2,2)}, v{vVA+op["j"]} offset:{4096*mp+2048}')
    def group_switch():
        E(f's_add_u32 s{sNXT}, s{sPAIR}, {PAIR}')
        E(f's_cmp_eq_u32 s{sNXT}, {LDS_BYTES}')
        E(f's_cselect_b32 s{sNXT}, 0, s{sNXT}')
        E(f's_sub_u32 s{sDELTA}, s{sNXT}, s{sPAIR}')
        E(f's_mov_b32 s{sPAIR}, s{sNXT}')
        for s in range(8):
            E(f'v_add_u32 v{vKA+s}, s{sDELTA}, v{vKA+s}')
        for j in range(4):
            E(f'v_add_u32 v{vVA+j}, s{sDELTA}, v{vVA+j}')
        BAR()
    def sm_ops(p):
        o = [f'v_mov_b64 v[{vLS}:{vLS+1}], v[{vL}:{vL+1}]']
        def fin(k):
            t0 = vT + 2*(k % 4)
            if PKADD:
                o.append(f'v_pk_add_f32 v[{vL}:{vL+1}], v[{vL}:{vL+1}], v[{t0}:{t0+1}]')
            else:
                o.append(f'v_add_f32 v{vL}, v{vL}, v{t0}')
                o.append(f'v_add_f32 v{vL+1}, v{vL+1}, v{t0+1}')
            o.append(f'v_cvt_pk_bf16_f32 v{vP[p]+k}, v{t0}, v{t0+1}')
        for k in range(8):
            t0 = vT + 2*(k % 4)
            o.append(f'v_exp_f32 v{t0}, v{vS[p]+2*k}')
            o.append(f'v_exp_f32 v{t0+1}, v{vS[p]+2*k+1}')
            if k > 0: fin(k-1)
        fin(7)
        return o

    for n in range(LA):
        frag_reads(n)
    C('first-unit max')
    E('s_nop 7')
    def maxtree(p, dst, tmp):
        s = vS[p]
        E(f'v_max3_f32 v{dst}, v{s}, v{s+1}, v{s+2}')
        E(f'v_max3_f32 v{tmp}, v{s+3}, v{s+4}, v{s+5}')
        E(f'v_max3_f32 v{dst}, v{dst}, v{s+6}, v{s+7}')
        E(f'v_max3_f32 v{tmp}, v{tmp}, v{s+8}, v{s+9}')
        E(f'v_max3_f32 v{dst}, v{dst}, v{s+10}, v{s+11}')
        E(f'v_max3_f32 v{tmp}, v{tmp}, v{s+12}, v{s+13}')
        E(f'v_max3_f32 v{dst}, v{dst}, v{s+14}, v{s+15}')
        E(f'v_max_f32 v{dst}, v{dst}, v{tmp}')
        E(f'v_mov_b32 v{tmp}, v{dst}')
        E('s_nop 1')
        E(f'v_permlane32_swap_b32 v{dst}, v{tmp}')
        E('s_nop 1')
        E(f'v_max_f32 v{dst}, v{dst}, v{tmp}')
    maxtree(0, vT, vT+1)
    for i in range(16):
        E(f'v_sub_f32 v{vNM+i}, 0, v{vT}')
        E(f'v_sub_f32 v{vS[0]+i}, v{vS[0]+i}, v{vT}')

    it_first = {}
    it_last = {}
    for n, op in enumerate(ops):
        it_first.setdefault(op['it'], n)
        it_last[op['it']] = n

    def emit_slots(n0, n1):
        for n in range(n0, n1):
            op = ops[n]
            u = op['it']
            cnt = sum(nlds(ops[k]) for k in range(n+1, min(n+LA, N)))
            E(f's_waitcnt lgkmcnt({cnt})')
            f = vF + 4*(n % NPOOL)
            if op['kind'] == 'qk':
                p = op['unit'] % 2
                mfma(vS[p], f, vQ + 4*op['s'], vNM if op['s'] == 0 else vS[p])
            else:
                p = op['unit'] % 2
                mfma(vO + 16*op['j'], f, vP[p] + 4*op['m'], vO + 16*op['j'])
            if n + LA < N:
                if group_of(ops[n+LA]) != group_of(ops[n+LA-1]):
                    group_switch()
                frag_reads(n + LA)
            if u <= 31:
                so = sm_ops(u % 2)
                ns = it_last[u] - it_first[u] + 1
                k = n - it_first[u]
                lo = (len(so) * k) // ns
                hi = (len(so) * (k+1)) // ns
                for x in so[lo:hi]:
                    E(x)
                if n == it_last[u]:
                    tag = f'{u}'
                    E(f'v_add_f32 v{vT}, v{vL}, v{vL+1}')
                    E(f'v_cmp_nge_f32 vcc, s{sTHR}, v{vT}')
                    E(f's_cbranch_vccnz K1_RARE_{tag}')
                    LB(f'K1_BACK_{tag}')
                    rare_sites.append((tag, u % 2))

    rare_sites = []
    emit_slots(it_first[0], it_last[0] + 1)
    E(f's_mov_b32 s{sCNT}, 15')
    if ALIGN:
        a = ALIGN.split('+')
        L.append(f'  .p2align {a[0]}, , 64' if False else f'  .p2alignl {a[0]}, 0xBF800000')
        for _ in range(int(a[1]) if len(a) > 1 else 0): E('s_nop 0')
    LB('K1_LOOP')
    mark = len(L)
    emit_slots(it_first[1], it_last[2] + 1)
    body0 = L[mark:]
    E(f's_sub_u32 s{sCNT}, s{sCNT}, 1')
    E(f's_cmp_lg_u32 s{sCNT}, 0')
    E('s_cbranch_scc1 K1_LOOP')
    save = list(L); rs = list(rare_sites)
    mark = len(L)
    emit_slots(it_first[3], it_last[4] + 1)
    body1 = [x.replace('_3', '_1').replace('_4', '_2') if 'K1_' in x else x for x in L[mark:]]
    assert body0 == body1, 'loop body not periodic'
    del L[len(save):]; rare_sites[:] = rs
    E('s_waitcnt lgkmcnt(0)')
    for n in range(it_first[31], it_first[31] + LA):
        frag_reads(n)
    emit_slots(it_first[31], N)

    C('epilogue')
    stamp()
    E('s_nop 15')
    E(f'v_add_f32 v{vT}, v{vL}, v{vL+1}')
    E(f'v_add_f32 v{vT+1}, v{vL}, v{vL+1}')
    E('s_nop 1')
    E(f'v_permlane32_swap_b32 v{vT}, v{vT+1}')
    E('s_nop 1')
    E(f'v_add_f32 v{vT}, v{vT}, v{vT+1}')
    E(f'v_rcp_f32 v{vT}, v{vT}')
    E(f's_mul_i32 s{sT0}, s{sB}, 7')
    E(f's_add_u32 s{sT0}, s{sT0}, s{sW}')
    E(f's_lshl_b32 s{sT0}, s{sT0}, 8')
    E(f's_lshl_b32 s{sT1}, s{sH}, 3')
    E(f's_add_u32 s{sT0}, s{sT0}, s{sT1}')
    E(f's_lshl_b32 s{sT0}, s{sT0}, 10')
    E(f's_add_u32 s{sT1}, s{sT0}, 4096')
    E(f'v_lshlrev_b32 v{vT+1}, 4, {ln}')
    for sp in range(8):
        j, hf = divmod(sp, 2)
        d = vF + 4*sp
        for e in range(0, 8, 2):
            a = vO + 16*j + 8*hf + e
            E(f'v_mul_f32 v{a}, v{vT}, v{a}')
            E(f'v_mul_f32 v{a+1}, v{vT}, v{a+1}')
            E(f'v_cvt_pk_bf16_f32 v{d+e//2}, v{a}, v{a+1}')
        E(f'buffer_store_dwordx4 {vr(d,4)}, v{vT+1}, {srd(S_WS)}, s{sT0 if sp < 4 else sT1} offen offset:{1024*(sp%4)} {NT_OST}')
    stamp()
    if PROF:
        E('s_waitcnt vmcnt(0)')
        stamp()
        stamp(True)
    prof_dump(sW, S_WS)
    dbg_end(0, 0, False, sW, S_WS)
    E('s_endpgm')

    for tag, p in rare_sites:
        LB(f'K1_RARE_{tag}')
        E('s_nop 15')
        E('s_nop 3')
        maxtree(p, vT, vT+1)
        E(f'v_max_f32 v{vT}, 0, v{vT}')
        E(f'v_exp_f32 v{vT+1}, -v{vT}')
        E('s_nop 0')
        for i in range(64):
            E(f'v_mul_f32 v{vO+i}, v{vT+1}, v{vO+i}')
        E(f'v_mul_f32 v{vL}, v{vT+1}, v{vLS}')
        E(f'v_mul_f32 v{vL+1}, v{vT+1}, v{vLS+1}')
        for i in range(16):
            E(f'v_sub_f32 v{vNM+i}, v{vNM+i}, v{vT}')
            E(f'v_sub_f32 v{vS[0]+i}, v{vS[0]+i}, v{vT}')
            E(f'v_sub_f32 v{vS[1]+i}, v{vS[1]+i}, v{vT}')
        for x in sm_ops(p)[1:]:
            x = x
            E(x)
        E('s_nop 1')
        E(f's_branch K1_BACK_{tag}')

def k1_loader():
    ln = f'v{vLANE}'
    vKo, vVo, vWo = 2, 6, 7
    C('loader wave')
    if 'L' in PRIO: E('s_setprio 3')
    E(f'v_lshrrev_b32 v10, 4, {ln}')
    E(f'v_and_b32 v11, 15, {ln}')
    E('v_xor_b32 v12, v11, v10')
    E('v_lshlrev_b32 v12, 4, v12')
    E(f'v_lshl_add_u32 v{vKo}, v10, 8, v12')
    for pp in range(1, 4):
        E(f'v_xor_b32 v{vKo+pp}, {64*pp}, v{vKo}')
    E('v_lshlrev_b32 v12, 2, v10')
    E('v_xor_b32 v12, v11, v12')
    E('v_lshlrev_b32 v12, 4, v12')
    E(f'v_lshl_add_u32 v{vVo}, v10, 8, v12')
    E(f'v_lshl_add_u32 v{vWo}, v10, 13, v12')
    E(f's_lshl_b32 s{sT3}, s{sH}, 8')

    def wq_fill(c):
        sl = xslots(c)[2]
        for p in range(14 if c == 0 else 0, 16):
            E(f's_mov_b32 m0, {sl*SLOT + p*1024}')
            E(f's_add_u32 s{sT1}, s{sT3}, {(64*c + 4*p) * 8192}')
            E(f'buffer_load_dwordx4 v{vWo}, {srd(S_WQ)}, s{sT1} offen {"nt" if c < NT0 else NT_W} lds')
    def kv_fill(which, tile, ldsbase):
        for g in range(4):
            E(f's_mov_b32 m0, {ldsbase + g*4096}')
            E(f's_mov_b32 s{sT1}, {tile*16384 + g*4096}')
            for pp in range(4):
                vo = vKo + pp if which == 'K' else vVo
                E(f'buffer_load_dwordx4 v{vo}, {srd(S_K if which=="K" else S_V)}, s{sT1} offen offset:{1024*pp} {NT_KV} lds')
    def group_fill(t):
        pair = (3 + t) % 5
        kv_fill('V', t, pair*PAIR)
        if t + 1 <= 15:
            kv_fill('K', t + 1, pair*PAIR + SLOT)

    wq_fill(0)
    wq_fill(1)
    E('s_waitcnt vmcnt(16)')
    BAR()
    wq_fill(2)
    for c in range(1, 6):
        E('s_waitcnt vmcnt(16)'); BAR()
        wq_fill(c + 2)
    E('s_waitcnt vmcnt(16)'); BAR()
    kv_fill('K', 0, 2*PAIR + SLOT)
    E('s_waitcnt vmcnt(16)'); BAR()
    group_fill(0)
    E(f'v_and_b32 v10, 0x13, {ln}')
    E(f'v_bfe_u32 v11, {ln}, 2, 1')
    E(f'v_bfe_u32 v12, {ln}, 3, 1')
    E('v_lshl_add_u32 v10, v11, 3, v10')
    E('v_lshl_add_u32 v10, v12, 2, v10')
    E('v_lshlrev_b32 v10, 1, v10')
    E(f'v_lshrrev_b32 v11, 5, {ln}')
    E('v_lshl_add_u32 v10, v11, 13, v10')
    E(f'v_add_u32 v11, 4096, v10')
    E(f'v_lshlrev_b32 v12, 4, {ln}')
    E(f's_lshl_b32 s{sT0}, s2, 14')
    E(f's_lshl_b32 s{sT2}, s2, 10')
    E(f's_add_u32 s{sT2}, s{sT2}, {WS_W_OFF}')
    def wo_loads(nb):
        d = 16 + 8*nb
        E(f's_add_u32 s{sT1}, s{sT0}, {nb*64}')
        for e in range(8):
            va = 10 if e < 4 else 11
            E(f'buffer_load_ushort v{d+e}, v{va}, {srd(S_WO)}, s{sT1} offen offset:{1024*(e%4)} {NT_WOL}')
    def wo_store(k):
        dd = 16 + 8*k
        for e in range(0, 8, 2):
            E(f'v_lshl_or_b32 v{160+4*k+e//2}, v{dd+e+1}, 16, v{dd+e}')
        E(f's_add_u32 s{sT1}, s{sT2}, {k*256*1024}')
        E(f'buffer_store_dwordx4 {vr(160+4*k,4)}, v12, {srd(S_WS)}, s{sT1} offen {NT_OST}')
    log = ['K0']*16 + ['g0']*32
    def wait_for(tag):
        last = max(i for i, x in enumerate(log) if x == tag)
        n = len(log) - 1 - last
        E(f's_waitcnt vmcnt({min(n, 63)})')
    wait_for('K0'); BAR()
    group_fill(1); log += ['g1']*32
    for t in range(0, 16):
        wait_for(f'g{t}'); BAR()
        if 2 <= t <= 9:
            wo_store(2*(t-2)); wo_store(2*(t-2)+1); log += ['s']*2
        if t <= 7:
            wo_loads(2*t); wo_loads(2*t+1); log += ['w']*16
        if t + 2 <= 15:
            group_fill(t + 2); log += [f'g{t+2}']*(32 if t + 2 < 15 else 16)

def k2():
    L.append('.globl mha_oproj_kernel')
    L.append('.p2align 8')
    L.append('.type mha_oproj_kernel,@function')
    LB('mha_oproj_kernel')
    S_WS2, S_OUT = 4, 8
    E('s_cmp_ge_u32 s2, 224')
    E('s_cbranch_scc1 K2_END')
    dbg_begin()
    E('s_load_dwordx2 s[12:13], s[0:1], 40')
    E('s_load_dwordx2 s[14:15], s[0:1], 56')
    E('s_and_b32 s16, s2, 7')
    E('s_lshr_b32 s17, s2, 3')
    E('s_mul_i32 s18, s17, 37')
    E('s_lshr_b32 s18, s18, 8')
    E('s_mul_i32 s19, s18, 7')
    E('s_sub_u32 s19, s17, s19')
    E('s_lshr_b32 s20, s16, 1')
    E('s_mul_i32 s20, s20, 7')
    E('s_add_u32 s20, s20, s19')
    E('s_and_b32 s21, s16, 1')
    E('s_lshl_b32 s21, s21, 2')
    E('s_add_u32 s21, s21, s18')
    E('v_lshrrev_b32 v193, 6, v0')
    E('v_and_b32 v194, 63, v0')
    E('s_nop 0')
    E('v_readfirstlane_b32 s22, v193')
    E('v_lshlrev_b32 v195, 4, v194')
    E('s_waitcnt lgkmcnt(0)')
    mk_srd(S_WS2, 14, 15, WS_USED)
    mk_srd(S_OUT, 12, 13, 8*224*512*2)
    if PROF:
        E(f's_mov_b32 s{sPIDX}, 0')
        E(f'v_mov_b32 v{vPROF}, 0')
    stamp(True)
    stamp()
    E(f's_lshl_b32 s23, s22, {10 if K2MODE == "str" else 15}')
    E('s_lshl_b32 s24, s20, 19')
    E('v_add_u32 v204, s24, v195')
    E('v_add_u32 v205, 0x40000, v204')
    E('s_lshl_b32 s26, s21, 19')
    E(f's_add_u32 s26, s26, {WS_W_OFF}')
    E('v_add_u32 v206, s26, v195')
    E('v_add_u32 v207, 0x40000, v206')
    ACC = 0
    BUF = 64
    DEPTH = K2DEPTH
    def loads(ks):
        d = BUF + 16*(ks % DEPTH)
        if ks > 0:
            E(f's_add_u32 s23, s23, {8192 if K2MODE == "str" else 1024}')
        for st in range(4):
            E(f'buffer_load_dwordx4 {vr(d+4*st,4)}, v{204+st}, {srd(S_WS2)}, s23 offen {NT_K2}')
    for ks in range(DEPTH - 1):
        loads(ks)
    for ks in range(32):
        if ks + DEPTH - 1 < 32:
            loads(ks + DEPTH - 1)
        rem = min(32 - 1 - ks, DEPTH - 1)
        E(f's_waitcnt vmcnt({4*rem})')
        d = BUF + 16*(ks % DEPTH)
        for a in range(2):
            for b_ in range(2):
                acc = ACC + 16*(2*a + b_)
                mfma(acc, d + 8 + 4*a, d + 4*b_, None if ks == 0 else acc)
    stamp()
    E('s_nop 15')
    E('s_lshl_b32 s23, s22, 14')
    E('v_add_u32 v196, s23, v195')
    for sl in range(8):
        for q4 in range(2):
            r = ACC + 8*sl + 4*q4
            E(f'ds_write_b128 v196, {vr(r,4)} offset:{sl*2048 + q4*1024}')
    E('s_waitcnt lgkmcnt(0)')
    E('s_barrier')
    E('s_lshl_b32 s23, s22, 11')
    E('v_add_u32 v196, s23, v195')
    E('v_add_u32 v197, 0x10000, v196')
    for p in range(8):
        va = 196 if p < 4 else 197
        for q4 in range(2):
            E(f'ds_read_b128 {vr(64+8*p+4*q4,4)}, v{va} offset:{(p%4)*16384 + q4*1024}')
    E('s_lshr_b32 s24, s22, 2')
    E('s_bfe_u32 s25, s22, 0x10001')
    E('s_and_b32 s26, s22, 1')
    E('s_lshl_b32 s27, s20, 6')
    E('s_lshl_b32 s25, s25, 5')
    E('s_add_u32 s27, s27, s25')
    E('s_lshl_b32 s27, s27, 10')
    E('s_lshl_b32 s28, s21, 7')
    E('s_lshl_b32 s24, s24, 6')
    E('s_lshl_b32 s26, s26, 5')
    E('s_add_u32 s27, s27, s28')
    E('s_add_u32 s27, s27, s24')
    E('s_add_u32 s27, s27, s26')
    E('v_and_b32 v198, 31, v194')
    E('v_lshrrev_b32 v199, 5, v194')
    E('v_lshlrev_b32 v199, 4, v199')
    E('v_lshl_add_u32 v198, v198, 10, v199')
    for p in range(1, 8):
        E(f's_waitcnt lgkmcnt({2*(7-p)})')
        for i in range(8):
            E(f'v_add_f32 v{64+i}, v{64+i}, v{64+8*p+i}')
    for i in range(4):
        E(f'v_cvt_pk_bf16_f32 v{200+i}, v{64+2*i}, v{64+2*i+1}')
    E(f'buffer_store_dwordx4 v[200:203], v198, {srd(S_OUT)}, s27 offen')
    if PROF:
        E('s_waitcnt vmcnt(0)')
        stamp()
        stamp(True)
    prof_dump(22, S_WS2, 1024*1024)
    dbg_end(0, 32, True, 22, S_WS2)
    LB('K2_END')
    E('s_endpgm')

header()
k1()
k2()
kd('mha_attn_kernel', 244 if PROF else 236, 96 if DBG else 72)
kd('mha_oproj_kernel', 244 if PROF else 208, 96 if DBG else (72 if PROF else 40))
open(OUT, 'w').write('\n'.join(L) + '\n')
print('wrote', OUT, len(L), 'lines')
```
